```python
import torch

def _softmax(x, axis=-1):
    return torch.softmax(x, dim=axis)

def _gelu(x):
    return torch.nn.functional.gelu(x, approximate='tanh')

def _silu(x):
    return torch.nn.functional.silu(x)

def _sigmoid(x):
    return torch.sigmoid(x)

def _layernorm(x, axis=-1, eps=1e-05):
    m = x.mean(dim=axis, keepdim=True)
    v = x.var(dim=axis, keepdim=True, unbiased=False)
    return (x - m) / torch.sqrt(v + eps)

def _scatter_add(tgt, idx, src, axis=0):
    return tgt.clone().index_add_(axis, idx, src)

def _segment_sum(src, seg, n):
    out = torch.zeros((n,) + src.shape[1:], dtype=src.dtype)
    return out.index_add_(0, seg, src)

def _pad(x, pw):
    flat = tuple((v for pair in reversed(pw) for v in pair))
    return torch.nn.functional.pad(x, flat)
kernel_name = 'adaLN_cond__sliding_local_dilated__glu_gated_swiglu__prompt'

def setup_inputs():

    _w = lambda a: (lambda t: t.to(torch.bfloat16) if t.is_floating_point() else t)(torch.as_tensor(a))

    def _A_setup():
        B, S, D = (1, 2048, 1024)
        return {'x': _w((lambda *s: torch.randn(*s, dtype=torch.bfloat16) * 0.05)(B, S, D)), 'wqkv': _w((lambda *s: torch.randn(*s, dtype=torch.bfloat16) * 0.05)(D, 3 * D)), 'wo': _w((lambda *s: torch.randn(*s, dtype=torch.bfloat16) * 0.05)(D, D))}
    _A_in = _A_setup()

    def _B_setup():
        B, S, D, F = (1, 2048, 1024, 3584)
        return {'x': _w((lambda *s: torch.randn(*s, dtype=torch.bfloat16) * 0.05)(B, S, D)), 'w1': _w((lambda *s: torch.randn(*s, dtype=torch.bfloat16) * 0.8)(D, F) * (2.0 / D) ** 0.5), 'w3': _w((lambda *s: torch.randn(*s, dtype=torch.bfloat16) * 0.8)(D, F) * (2.0 / D) ** 0.5), 'w2': _w((lambda *s: torch.randn(*s, dtype=torch.bfloat16) * 0.8)(F, D) * (2.0 / F) ** 0.5)}
    _B_in = _B_setup()
    return {'A_x': _A_in['x'], 'A_wqkv': _A_in['wqkv'], 'A_wo': _A_in['wo'], 'B_x': _B_in['x'], 'B_w1': _B_in['w1'], 'B_w3': _B_in['w3'], 'B_w2': _B_in['w2'], 'c': _w((lambda *s: torch.randn(*s, dtype=torch.bfloat16) * 0.1)(1, 1024) * 8.0), 'w_mod': _w((lambda *s: torch.randn(*s, dtype=torch.bfloat16) * 0.1)(1024, 6 * 1024) * 1024 ** (-0.5) * 8.0)}

def reference(A_x, A_wqkv, A_wo, B_x, B_w1, B_w3, B_w2, c, w_mod):

    def _A_ref(x, wqkv, wo):
        B, S, D = x.shape
        H = 32
        Dh = D // H
        W, dil = (8, 2)
        qkv = (lambda x, *d: x.permute(*d))((x @ wqkv).reshape(B, S, 3, H, Dh), 2, 0, 3, 1, 4)
        q, k, v = (qkv[0], qkv[1], qkv[2])
        scale = Dh ** (-0.5)
        pos = torch.arange(S)
        off = torch.arange(W) * dil
        idx = pos[:, None] - off[None, :]
        mask = idx >= 0
        idx_c = torch.where(mask, idx, 0).reshape(-1)
        kg = k[:, :, idx_c, :].reshape(B, H, S, W, Dh)
        vg = v[:, :, idx_c, :].reshape(B, H, S, W, Dh)
        logits = torch.einsum('bhsd,bhswd->bhsw', q, kg) * scale
        logits = torch.where(mask[None, None, :, :], logits, -1000000000.0)
        attn = _softmax(logits, axis=-1)
        o = torch.einsum('bhsw,bhswd->bhsd', attn, vg)
        return (lambda x, *d: x.permute(*d))(o, 0, 2, 1, 3).reshape(B, S, D) @ wo

    def _B_ref(x, w1, w3, w2):
        gate = torch.einsum('bsd,df->bsf', x, w1)
        up = torch.einsum('bsd,df->bsf', x, w3)
        h = _silu(gate) * up
        out = torch.einsum('bsf,fd->bsd', h, w2)
        return out
    x = A_x
    mod = (_silu(c) @ w_mod).reshape(c.shape[0], 6, 1, -1)
    sa, ca, ga, sb, cb, gb = (mod[:, 0].clone(), mod[:, 1].clone(), mod[:, 2].clone(), mod[:, 3].clone(), mod[:, 4].clone(), mod[:, 5].clone())
    h = _layernorm(x, axis=-1) * (1 + ca) + sa
    x = x + ga * _A_ref(h, A_wqkv, A_wo)
    h = _layernorm(x, axis=-1) * (1 + cb) + sb
    x = x + gb * _B_ref(h, B_w1, B_w3, B_w2)
    return x
```

```python
import re

TRANS = {"v_exp_f32", "v_log_f32", "v_rcp_f32", "v_rsq_f32", "v_sqrt_f32", "v_sin_f32", "v_cos_f32"}
_REG1 = re.compile(r"^([vsa])(\d+)$")
_REGN = re.compile(r"^([vsa])\[(\d+):(\d+)\]$")


def parse_reg(tok):
    t = tok.strip()
    t = t.lstrip("-")
    if t.startswith("abs(") and t.endswith(")"):
        t = t[4:-1]
    if t.startswith("|") and t.endswith("|"):
        t = t[1:-1]
    m = _REG1.match(t)
    if m:
        return {(m.group(1), int(m.group(2)))}
    m = _REGN.match(t)
    if m:
        return {(m.group(1), i) for i in range(int(m.group(2)), int(m.group(3)) + 1)}
    if t == "vcc":
        return {("s", 106), ("s", 107)}
    if t == "vcc_lo":
        return {("s", 106)}
    if t == "vcc_hi":
        return {("s", 107)}
    if t == "exec":
        return {("x", 0)}
    if t == "m0":
        return {("m", 0)}
    return set()


def split_ops(s):
    out, depth, cur = [], 0, ""
    for ch in s:
        if ch in "[(":
            depth += 1
        elif ch in "])":
            depth -= 1
        if ch == "," and depth == 0:
            out.append(cur.strip())
            cur = ""
        else:
            cur += ch
    if cur.strip():
        out.append(cur.strip())
    return out


class Ins:
    __slots__ = ("text", "kind", "dst", "src", "srcA", "srcB", "srcC", "passes", "trans", "dpp",
                 "perm", "rdlane", "wide_data", "ldsdma", "states", "mn", "sdst_valu")

    def __init__(self, text):
        self.text = text
        body = text.split(";")[0].strip()
        parts = body.split(None, 1)
        mn = parts[0]
        self.mn = mn
        rest = parts[1] if len(parts) > 1 else ""
        ops = split_ops(rest)
        mods = []
        if ops:
            lt = ops[-1].split()
            if len(lt) > 1:
                ops[-1] = lt[0]
                mods = lt[1:]
        self.kind = "other"
        self.dst = set()
        self.src = set()
        self.srcA = self.srcB = self.srcC = set()
        self.passes = 0
        self.trans = False
        self.dpp = False
        self.perm = False
        self.rdlane = False
        self.wide_data = set()
        self.ldsdma = False
        self.states = 1
        self.sdst_valu = set()
        R = [parse_reg(o) for o in ops]
        base = mn.replace("_e32", "").replace("_e64", "").replace("_dpp", "")
        if mn.startswith("v_mfma"):
            self.kind = "mfma"
            self.dst = R[0]
            self.srcA, self.srcB, self.srcC = R[1], R[2], R[3]
            self.src = R[1] | R[2] | R[3]
            self.passes = 8 if "32x32x16" in mn else 4
        elif mn.startswith("v_"):
            self.kind = "valu"
            if base.startswith("v_permlane") and "swap" in base:
                self.dst = R[0] | R[1]
                self.src = R[0] | R[1]
                self.perm = True
            elif base in ("v_add_co_u32", "v_sub_co_u32", "v_addc_co_u32", "v_subb_co_u32"):
                self.dst = R[0] | R[1]
                for r in R[2:]:
                    self.src |= r
            else:
                self.dst = R[0]
                for r in R[1:]:
                    self.src |= r
                if base in ("v_fmac_f32", "v_dot2c_f32_bf16", "v_writelane_b32"):
                    self.src |= R[0]
            if base in ("v_readfirstlane_b32", "v_readlane_b32"):
                self.rdlane = True
            self.trans = base in TRANS
            self.dpp = any(m.startswith(("quad_perm", "row_", "wave_")) for m in mods) or mn.endswith("_dpp")
            self.sdst_valu = {r for r in self.dst if r[0] == "s"}
        elif mn.startswith("s_"):
            self.kind = "salu"
            if mn == "s_nop":
                self.states = int(ops[0], 0) + 1
            elif mn.startswith(("s_cmp", "s_waitcnt", "s_barrier", "s_branch", "s_cbranch", "s_setprio",
                                "s_endpgm", "s_sleep")):
                for r in R:
                    self.src |= r
            elif mn.startswith(("s_load", "s_buffer_load")):
                self.kind = "smem"
                self.dst = R[0]
                for r in R[1:]:
                    self.src |= r
            else:
                self.dst = R[0] if R else set()
                for r in R[1:]:
                    self.src |= r
                if "saveexec" in mn:
                    self.dst = self.dst | {("x", 0)}
        elif mn.startswith(("buffer_", "global_")):
            self.kind = "vmem"
            lds = "lds" in mods or "_lds_" in mn
            if "atomic" in mn:
                for r in R:
                    self.src |= r
                if "sc0" in mods:
                    self.dst = R[0]
            elif "load" in mn and not lds:
                self.dst = R[0]
                for r in R[1:]:
                    self.src |= r
            else:
                for r in R:
                    self.src |= r
                if lds:
                    self.ldsdma = True
                    self.src |= {("m", 0)}
                elif "store" in mn and ("x4" in mn or "x3" in mn):
                    self.wide_data = R[0] if mn.startswith("buffer_") else R[1]
        elif mn.startswith("ds_"):
            self.kind = "ds"
            if mn.startswith(("ds_read", "ds_bpermute", "ds_permute", "ds_swizzle")) or "_rtn_" in mn:
                self.dst = R[0]
                for r in R[1:]:
                    self.src |= r
            else:
                for r in R:
                    self.src |= r
        else:
            raise ValueError("unknown instruction: " + text)


def need_states(p, c):
    n = 0
    vdst_p = {r for r in p.dst if r[0] in "va"}
    if p.kind == "valu":
        if c.kind == "mfma" and (vdst_p & c.src):
            n = max(n, 2)
        if c.kind == "valu":
            if c.dpp and (vdst_p & c.src):
                n = max(n, 2)
            if c.perm and (vdst_p & c.src):
                n = max(n, 2)
            if c.rdlane and (vdst_p & c.src):
                n = max(n, 1)
            if p.trans and not c.trans and (vdst_p & (c.src | c.dst)):
                n = max(n, 1)
            if p.sdst_valu & c.src:
                n = max(n, 4 if c.rdlane else 2)
        if p.mn.startswith("v_dot") and (vdst_p & (c.src | c.dst)) and c.kind in ("valu", "vmem", "ds", "mfma"):
            n = max(n, 3)
        if c.kind == "vmem" and (p.sdst_valu & c.src):
            n = max(n, 5)
        if c.kind in ("salu", "smem") and (p.sdst_valu & c.src):
            n = max(n, 4)
    if p.kind == "mfma":
        big = {4: 8, 8: 12}[p.passes]
        if c.kind == "mfma":
            if p.dst & (c.srcA | c.srcB):
                n = max(n, big)
            if p.dst & c.srcC:
                if not (p.dst == c.srcC and p.passes == c.passes):
                    n = max(n, {4: 6, 8: 10}[p.passes])
            elif p.dst & c.dst:
                n = max(n, big)
        elif c.kind in ("valu", "vmem", "ds"):
            if p.dst & (c.src | c.dst):
                n = max(n, big)
        if c.kind == "valu" and (p.srcC & c.dst):
            n = max(n, {4: 3, 8: 7}[p.passes])
    if p.kind == "salu" and (("m", 0) in p.dst) and c.ldsdma:
        n = max(n, 1)
    if p.kind == "vmem" and p.wide_data:
        if p.wide_data & c.dst:
            n = max(n, 2)
    return n


class Asm:
    def __init__(self):
        self.lines = []
        self.hist = []
        self.nops = 0

    def raw(self, s):
        self.lines.append(s)

    def comment(self, s):
        self.lines.append("    ; " + s)

    def _pad_for(self, ins):
        need = 0
        dist = 0
        for p in reversed(self.hist):
            k = need_states(p, ins) - dist
            if k > need:
                need = k
            dist += p.states
            if dist > 24:
                break
        return need

    def op(self, text):
        ins = Ins(text)
        need = self._pad_for(ins)
        while need > 0:
            k = min(need, 16)
            nop = Ins("s_nop %d" % (k - 1))
            self.lines.append("    s_nop %d" % (k - 1))
            self.hist.append(nop)
            self.nops += 1
            need -= k
        self.lines.append("    " + text)
        self.hist.append(ins)
        if len(self.hist) > 64:
            self.hist = self.hist[-40:]
        return ins

    def ops(self, text):
        for l in text.strip().splitlines():
            l = l.strip()
            if l and not l.startswith(";"):
                self.op(l)

    def label(self, name):
        self.lines.append(name + ":")

    def flush(self, n=20):
        self.op("s_nop 15")
        self.op("s_nop 3")

    def mark(self):
        return len(self.lines)

    def check_loop(self, start_mark):
        body = [l.strip() for l in self.lines[start_mark:] if l.startswith("    ") and not l.strip().startswith(";")]
        sim = Asm()
        for l in body:
            sim.hist.append(Ins(l))
        sim.hist = sim.hist[-40:]
        for l in body[:40]:
            ins = Ins(l)
            need = sim._pad_for(ins)
            assert need == 0, "loop back-edge hazard at: %s (need %d)" % (l, need)
            sim.hist.append(ins)

    def text(self):
        return "\n".join(self.lines) + "\n"
```

```python
from gen3 import *
import gen3 as G


PAT = ((0, 8, 14, 22), (6, 7, 20, 21))
DGRP = [(0, 0), (0, 1), (0, 2), (0, 3), (1, 0), (0, 4), (0, 5)]


def build_stages():
    ix = {}
    ix["K"] = sweep("K", sQKV, vDq, s_bq, 6144, 2048, 0)
    ix["M"] = len(STAGES)

    def mitems(slot):
        out = []
        for ks in range(8):
            a = vr(TX, 4)
            out.append((["v_mfma_f32_16x16x32_bf16 %s, %%W, %s, %s" % (a, vr(AC[1] + 4 * ks, 4), "0" if ks == 0 else a)],
                        ["ds_read_b64_tr_b16 %%W, %s offset:%d" % (vr(vA2), (slot & 1) * 32768 + h * 16384 + ks * 1024) for h in range(2)]))
        return out
    add_stage("M", sWM, vDm, s_bm, [(0, 4, None), (128 * 12288, 4, None)], mitems)
    ix["V"] = sweep("V", sQKV, vDq, s_bq, 6144, 4096, 1, swap=True)
    ix["Q"] = sweep("Q", sQKV, vDq, s_bq, 6144, 0, 0)
    ix["O"] = sweep("O", sWO, vD2, s_bo, 2048, 0, 0)
    ix["G0"] = sweep("G0", sW1, vDf, s_bf, 7168, 0, 0)
    ix["U0"] = sweep("U0", sW3, vDf, s_bf, 7168, 0, 2)
    ix["G1"] = sweep("G1", sW1, vDf, s_bf, 7168, 128, 1)
    ix["U1"] = sweep("U1", sW3, vDf, s_bf, 7168, 128, 2)
    ix["H"] = sweep("H", sWH, vDh, s_bh, 7168, 0, 0, himg=True)
    ix["G2"] = sweep("G2", sW1, vDf, s_bf, 7168, 256, 1)
    ix["U2"] = sweep("U2", sW3, vDf, s_bf, 7168, 256, 2)
    for j in range(4):
        ix["D%d" % j] = sweep("D%d" % j, sW2, vDd, s_bd4 + j, 2048, 0, (0, 1, 2, 0)[j], nks=28,
                              gconst=lambda gi: (DGRP[gi][1] * 65536, 4, vDe if DGRP[gi][0] else None))
    return ix


KF = AC[2]
KP = AC[2] + 16
VP = U
XRES = [AC[2] + 24, U + 24]


def kf(f, hd):
    return KF + 8 * f + 4 * hd


def vp(hd, tau):
    return VP + 6 * (2 * hd + tau)


def halo_addrs():
    ops = ["s_lshl_b32 %s, %s, 12" % (sr(s_t0), sr(s_w)),
           "s_add_u32 %s, %s, %d" % (sr(s_t0), sr(s_t0), XCH + 4096),
           "v_add_u32 %s, %s, %s" % (vr(vA0), sr(s_t0), vr(vL16))]
    g2 = ["s_lshl_b32 %s, %s, 4" % (sr(s_t0), sr(s_rb)),
          "s_add_u32 %s, %s, %s" % (sr(s_t0), sr(s_t0), sr(s_c)),
          "s_lshl_b32 %s, %s, 12" % (sr(s_t0), sr(s_t0)),
          "s_add_u32 %s, %s, 0x%x" % (sr(s_t0), sr(s_t0), WS_HALO),
          "s_cmp_eq_u32 %s, 3" % sr(s_w),
          "s_cselect_b32 %s, %s, %s" % (sr(s_t0), sr(s_t0), sr(s_oob)),
          "v_add_u32 %s, %s, %s" % (vr(vA1), sr(s_t0), vr(vL16))]
    return [X(*ops), X(*g2)]


def halo_signal():
    ops = cnt_line(1, s_c, 0) + [
        "s_cmp_eq_u32 %s, 3" % sr(s_w),
        "s_cselect_b32 %s, %s, %s" % (sr(s_t0), sr(s_t0), sr(s_oob)),
        "s_cmp_lt_u32 %s, 15" % sr(s_rb),
        "s_cselect_b32 %s, %s, %s" % (sr(s_t0), sr(s_t0), sr(s_oob))] + lane0_addr(s_t0, T0)
    return X(*ops), X(*signal_ops(T0))


def k_final():
    q = [Ex("delay", 3)] + halo_addrs()
    for f in (1, 0):
        for hd in range(2):
            a = acc_reg(0, f, 2 * hd)
            q += singles(["v_mul_f32 %s, %s, %s" % (vr(a + i), vr(RC + f), vr(a + i)) for i in range(8)])
            q += singles(["v_cvt_pk_bf16_f32 %s, %s, %s" % (vr(kf(f, hd) + i), vr(a + 2 * i), vr(a + 2 * i + 1)) for i in range(4)])
        if f == 1:
            for hd in range(2):
                q.append(X("buffer_store_dwordx4 %s, %s, %s, 0 offen offset:%d sc1" % (vr(kf(1, hd), 4), vr(vA1), sr(sWS, 4), 1024 * hd), tag="hk"))
                q.append(X("ds_write_b128 %s, %s offset:%d" % (vr(vA0), vr(kf(1, hd), 4), 1024 * hd)))
    a, b = halo_signal()
    q += [Ex("delay", 70), a, Ex("wtag", "hk"), b]
    return q


def v_final():
    q = [Ex("delay", 3),
         X("v_lshrrev_b32 %s, 1, %s" % (vr(T0 + 1), vr(vL16))),
         X("v_sub_u32 %s, %s, %s" % (vr(vA0), vr(vA0), vr(T0 + 1))),
         X("v_sub_u32 %s, %s, %s" % (vr(vA1), vr(vA1), vr(T0 + 1)))]
    for f in (1, 0):
        for t in range(4):
            a = acc_reg(1, f, t)
            d = vp(t >> 1, t & 1) + 2 + 2 * f
            q += singles(["v_mul_f32 %s, %s, %s" % (vr(a + r), vr(RT + 4 * f + r), vr(a + r)) for r in range(4)])
            q += singles(["v_cvt_pk_bf16_f32 %s, %s, %s" % (vr(d + i), vr(a + 2 * i), vr(a + 2 * i + 1)) for i in range(2)])
        if f == 1:
            for t in range(4):
                d = vp(t >> 1, t & 1) + 4
                q.append(X("buffer_store_dwordx2 %s, %s, %s, 0 offen offset:%d sc1" % (vr(d, 2), vr(vA1), sr(sWS, 4), 2048 + 512 * t), tag="hv"))
            for t in range(4):
                d = vp(t >> 1, t & 1) + 4
                q.append(X("ds_write_b64 %s, %s offset:%d" % (vr(vA0), vr(d, 2), 2048 + 512 * t)))
    a, b = halo_signal()
    q += [Ex("delay", 40), a, Ex("wtag", "hv"), b, Ex("bar")]
    return q


def halo_poll_addr(expect):
    return cnt_line(0, s_c, 0) + [
        "s_cmp_eq_u32 %s, 0" % sr(s_w),
        "s_cselect_b32 %s, %s, 0" % (sr(s_t1), sr(s_rb)),
        "s_cmp_lg_u32 %s, 0" % sr(s_t1),
        "s_cselect_b32 %s, %s, %s" % (sr(s_t0), sr(s_t0), sr(s_oob)),
        "s_cselect_b32 %s, %d, 0" % (sr(s_t1), expect)] + lane0_addr(s_t0, vPA) + [
        "v_mov_b32 %s, 0" % vr(vPE),
        "v_writelane_b32 %s, %s, 0" % (vr(vPE), sr(s_t1))]


def halo_fetch(off):
    return ["s_lshl_b32 %s, %s, 4" % (sr(s_t0), sr(s_rb)),
            "s_add_u32 %s, %s, %s" % (sr(s_t0), sr(s_t0), sr(s_c)),
            "s_lshl_b32 %s, %s, 12" % (sr(s_t0), sr(s_t0)),
            "s_add_u32 %s, %s, 0x%x" % (sr(s_t0), sr(s_t0), WS_HALO - 65536),
            "s_cmp_lg_u32 %s, 0" % sr(s_rb),
            "s_cselect_b32 %s, %s, %s" % (sr(s_t0), sr(s_t0), sr(s_oob)),
            "s_cmp_eq_u32 %s, 0" % sr(s_w),
            "s_cselect_b32 %s, %s, %s" % (sr(s_t0), sr(s_t0), sr(s_oob)),
            "s_cselect_b32 %s, 0, 16384" % sr(s_t1),
            "s_add_u32 m0, %s, %d" % (sr(s_t1), XCH),
            "v_add_u32 %s, %s, %s" % (vr(vA3), sr(s_t0), vr(vL16)),
            "buffer_load_dwordx4 %s, %s, 0 offen offset:%d sc1 lds" % (vr(vA3), sr(sWS, 4), off),
            "buffer_load_dwordx4 %s, %s, 0 offen offset:%d sc1 lds" % (vr(vA3), sr(sWS, 4), off + 1024)]


def masks(E):
    t = T0
    E.op("v_and_b32 %s, 15, v1" % vr(t))
    E.op("v_lshrrev_b32 %s, 4, v1" % vr(t + 1))
    E.op("v_lshlrev_b32 %s, 2, %s" % (vr(t + 1), vr(t + 1)))
    E.op("v_sub_u32 %s, %s, %s" % (vr(t + 1), vr(t), vr(t + 1)))
    E.op("s_mov_b32 %s, 0x80000001" % sr(s_t0))
    for r in range(4):
        E.op("v_sub_u32 %s, %d, %s" % (vr(t + 2), r - 2, vr(t + 1)))
        E.op("v_and_b32 %s, %s, %s" % (vr(t + 2), sr(s_t0), vr(t + 2)))
        E.op("v_cmp_eq_u32 %s, 0, %s" % (sr(s_msk + 2 * r, 2), vr(t + 2)))
        E.op("v_subrev_u32 %s, %d, %s" % (vr(t + 2), r, vr(t + 1)))
        E.op("v_and_b32 %s, %s, %s" % (vr(t + 2), sr(s_t0), vr(t + 2)))
        E.op("v_cmp_eq_u32 %s, 0, %s" % (sr(s_msk + 8 + 2 * r, 2), vr(t + 2)))
    E.op("s_cmp_eq_u32 %s, 0" % sr(s_OW))
    for r in range(4):
        E.op("s_cselect_b64 %s, 0, %s" % (sr(s_msk + 16 + 2 * r, 2), sr(s_msk + 2 * r, 2)))


def attention(E):
    UN = [(f, hd) for f in range(2) for hd in range(2)]
    Qf = [WF + 4 * u for u in range(4)]
    Pf = [WF + 16 + 4 * u for u in range(4)]
    mx = [WF + 32 + u for u in range(4)]
    tt = [WF + 36 + u for u in range(4)]
    sm = [WF + 40 + 2 * u for u in range(4)]
    Sx = [AC[1] + 8 * u for u in range(4)]
    Ot = [AC[0] + 8 * u for u in range(4)]
    t = T0
    E.op("s_lshl_b32 %s, %s, 12" % (sr(s_t0), sr(s_w)))
    E.op("s_add_u32 %s, %s, %d" % (sr(s_t0), sr(s_t0), XCH))
    E.op("v_add_u32 %s, %s, %s" % (vr(vA0), sr(s_t0), vr(vL16)))
    E.op("v_lshl_add_u32 %s, v1, 3, %s" % (vr(vA1), sr(s_t0)))
    E.wait_tag("hkf")
    for hd in range(2):
        E.op("ds_read_b128 %s, %s offset:%d" % (vr(KP + 4 * hd, 4), vr(vA0), 1024 * hd))
    E.ops(halo_poll_addr(2))
    E.ops(poll_issue(vPD, vPA))
    for f in range(2):
        E.op("v_mov_b32 %s, %s" % (vr(t + 2 + 2 * f), vr(RC + f)))
        E.op("v_mov_b32 %s, %s" % (vr(t + 3 + 2 * f), vr(RC + f)))
    for u, (f, hd) in enumerate(UN):
        a = acc_reg(0, f, 2 * hd)
        for i in range(0, 8, 2):
            E.op("v_pk_mul_f32 %s, %s, %s" % (vr(a + i, 2), vr(a + i, 2), vr(t + 2 + 2 * f, 2)))
    for u, (f, hd) in enumerate(UN):
        a = acc_reg(0, f, 2 * hd)
        for i in range(4):
            E.op("v_cvt_pk_bf16_f32 %s, %s, %s" % (vr(Qf[u] + i), vr(a + 2 * i), vr(a + 2 * i + 1)))
    for u, (f, hd) in enumerate(UN):
        prev = KP + 4 * hd if f == 0 else kf(0, hd)
        E.op("v_mfma_f32_16x16x32_bf16 %s, %s, %s, 0" % (vr(Sx[u] + 4, 4), vr(kf(f, hd), 4), vr(Qf[u], 4)))
        E.op("v_mfma_f32_16x16x32_bf16 %s, %s, %s, 0" % (vr(Sx[u], 4), vr(prev, 4), vr(Qf[u], 4)))
    poll_check(E, vPD, vPA, vPE)
    for x in halo_fetch(2048):
        E.op(x, tag="hvf")
    SC = 32 ** -0.5 * 1.4426950408889634
    E.op("s_mov_b32 %s, %s" % (sr(s_t0), f32hex(SC)))
    E.op("s_mov_b32 %s, %s" % (sr(s_t1), f32hex(SC)))
    E.op("v_mov_b32 %s, %s" % (vr(t), f32hex(-1.0e30)))
    for u in range(4):
        for x in range(0, 8, 2):
            E.op("v_pk_mul_f32 %s, %s, %s" % (vr(Sx[u] + x, 2), vr(Sx[u] + x, 2), sr(s_t0, 2)))
    for u, (f, hd) in enumerate(UN):
        s = Sx[u]
        pm = s_msk + 16 if f == 0 else s_msk
        for r in range(4):
            E.op("v_cndmask_b32 %s, %s, %s, %s" % (vr(s + r), vr(t), vr(s + r), sr(pm + 2 * r, 2)))
            E.op("v_cndmask_b32 %s, %s, %s, %s" % (vr(s + 4 + r), vr(t), vr(s + 4 + r), sr(s_msk + 8 + 2 * r, 2)))
    for u in range(4):
        s = Sx[u]
        E.op("v_max3_f32 %s, %s, %s, %s" % (vr(mx[u]), vr(s), vr(s + 1), vr(s + 2)))
        E.op("v_max3_f32 %s, %s, %s, %s" % (vr(tt[u]), vr(s + 3), vr(s + 4), vr(s + 5)))
    for u in range(4):
        s = Sx[u]
        E.op("v_max3_f32 %s, %s, %s, %s" % (vr(mx[u]), vr(mx[u]), vr(s + 6), vr(s + 7)))
    for u in range(4):
        E.op("v_max_f32 %s, %s, %s" % (vr(mx[u]), vr(mx[u]), vr(tt[u])))
    xgroup_reduce_n(E, mx, tt, "v_max_f32")
    for u in range(4):
        for x in range(8):
            E.op("v_sub_f32 %s, %s, %s" % (vr(Sx[u] + x), vr(Sx[u] + x), vr(mx[u])))
    for u in range(4):
        for x in range(8):
            E.op("v_exp_f32 %s, %s" % (vr(Sx[u] + x), vr(Sx[u] + x)))
    E.wait_tag("hvf")
    for q in range(4):
        E.op("ds_read_b64 %s, %s offset:%d" % (vr(vp(q >> 1, q & 1), 2), vr(vA1), 2048 + 512 * q))
    for u in range(4):
        s = Sx[u]
        E.op("v_pk_add_f32 %s, %s, %s" % (vr(sm[u], 2), vr(s, 2), vr(s + 2, 2)))
    for x in (4, 6):
        for u in range(4):
            E.op("v_pk_add_f32 %s, %s, %s" % (vr(sm[u], 2), vr(sm[u], 2), vr(Sx[u] + x, 2)))
    for u in range(4):
        E.op("v_add_f32 %s, %s, %s" % (vr(sm[u]), vr(sm[u]), vr(sm[u] + 1)))
    xgroup_reduce_n(E, sm, tt, "v_add_f32")
    for u in range(4):
        E.op("v_rcp_f32 %s, %s" % (vr(sm[u]), vr(sm[u])))
    for u in range(4):
        E.op("v_mov_b32 %s, %s" % (vr(sm[u] + 1), vr(sm[u])))
    for u in range(4):
        for x in range(0, 8, 2):
            E.op("v_pk_mul_f32 %s, %s, %s" % (vr(Sx[u] + x, 2), vr(Sx[u] + x, 2), vr(sm[u], 2)))
    for u in range(4):
        for d in range(4):
            E.op("v_cvt_pk_bf16_f32 %s, %s, %s" % (vr(Pf[u] + d), vr(Sx[u] + 2 * d), vr(Sx[u] + 2 * d + 1)))
    for u, (f, hd) in enumerate(UN):
        for tau in range(2):
            E.op("v_mfma_f32_16x16x32_bf16 %s, %s, %s, 0" % (vr(Ot[u] + 4 * tau, 4), vr(vp(hd, tau) + 2 * f, 4), vr(Pf[u], 4)))
    E.op("s_lshl_b32 %s, %s, 12" % (sr(s_t0), sr(s_c)))
    E.op("s_add_u32 %s, %s, %s" % (sr(s_t0), sr(s_t0), sr(s_OW)))
    E.op("s_add_u32 %s, %s, 0x%x" % (sr(s_x), sr(s_t0), WS_O))
    for u, (f, hd) in enumerate(UN):
        for d in range(4):
            E.op("v_cvt_pk_bf16_f32 %s, %s, %s" % (vr(Qf[u] + d), vr(Ot[u] + 2 * d), vr(Ot[u] + 2 * d + 1)))
        E.op("buffer_store_dwordx4 %s, %s, %s, %s offen offset:%d sc1" % (vr(Qf[u], 4), vr(vL16), sr(sWS, 4), sr(s_x), 2048 * hd + 1024 * f))


FFB = D * F * 2


def pfq(first, code, jobs, span=120):
    q = [Ex("at", first + 2)] + [X(*o) for o in code]
    if "nopf" in DBG:
        return q
    for i, o in enumerate(jobs):
        q += [Ex("at", first + 6 + i * span // max(1, len(jobs))), X(o[0]), X(o[1])]
    return q


def main(dst):
    E = Em()
    E.junk = {("v", vJUNK)}
    ix = build_stages()
    St = Stream(E, STAGES, WF, NFR, low=opt("LOW", 14), dma_gap=opt("DGAP", 5))
    fi = lambda n: St.first_item[ix[n]]
    if "stamp" in DBG:
        heads = {v: k for k, v in ix.items()}
        St.stamp_fn = lambda si: stamp(E, "bar " + heads[si]) if si in heads else None
    if "fine" in DBG:
        St.stamp_fn = lambda si: stamp(E, "bar " + STAGES[si].name)
        St.pre_fn = lambda si: stamp(E, "pre " + STAGES[si].name)
    St.novm = "novm" in DBG
    St.maxrr = opt("MAXRR", 1)
    prologue(E)
    gemv1(E)
    vsum, vsq = x_stream(E)
    stamp(E, "x done")
    h0_addr(E, 0, 32)
    E.ops(poll_issue(vPD, vPA))
    row_consts(E, vsum, vsq)
    E.op("v_and_b32 %s, 48, v1" % vr(T0))
    for r in range(4):
        E.op("v_add_u32 %s, %d, %s" % (vr(T0 + 1 + r), 4 * r, vr(T0)))
    for f in range(2):
        for r in range(4):
            E.op("ds_bpermute_b32 %s, %s, %s" % (vr(RT + 4 * f + r), vr(T0 + 1 + r), vr(RC + f)))
    poll_check(E, vPD, vPA, vPE)
    E.wait(lg=0)
    stamp(E, "h0 seen")
    E.op("s_barrier")
    table_loads(E, WS_P1, 8192, 0, 4096, WF)
    St.issue_dma_now(0)
    masks(E)
    table_build(E, WF, True)
    E.wait(lg=0)
    E.op("s_barrier")
    stamp(E, "table1")

    j1 = code_touch("S_K_M") + ([] if "nopf" in DBG else w_touch(sQKV, 0, 6 * MB) + w_touch(sWO, 0, 2 * MB))

    def btw(n):
        if n in (0, 2, 4, 6):
            St.issue_dma_now(1 + (n // 4), 1)
        if n >= 8 and n % 6 == 2 and j1:
            E.ops(j1.pop(0))
    modulate(E, btw)
    assert not j1
    stamp(E, "mod1 done")
    St.preread(16)
    mslot = ix["M"] % 4
    qk = [X("s_lshl_b32 %s, %s, 5" % (sr(s_t0), sr(s_w)), "v_xor_b32 %s, %s, %s" % (vr(vA2), sr(s_t0), vr(aW[mslot >> 1][0]))),
          X("v_and_b32 %s, 48, v1" % vr(T0)),
          X("v_add_u32 %s, %d, %s" % (vr(T0), CS, vr(T0)))]
    qk += [X("ds_read_b128 %s, %s offset:%d" % (vr(AC[1] + 4 * ks, 4), vr(T0), 64 * ks)) for ks in range(8)]
    qk += [X("v_and_b32 %s, 15, v1" % vr(T0 + 1)),
           X("v_lshlrev_b32 %s, 11, %s" % (vr(T0 + 1), vr(T0 + 1))),
           X("v_lshrrev_b32 %s, 4, v1" % vr(T0 + 2)),
           X("v_lshl_add_u32 %s, %s, 3, %s" % (vr(T0 + 1), vr(T0 + 2), vr(T0 + 1)))]
    for f in range(2):
        qk.append(X("s_add_u32 %s, %s, %s" % (sr(s_x), sr(s_OW), sr(s_bo)), "s_add_u32 %s, %s, %d" % (sr(s_x), sr(s_x), 32768 * f)))
        for t in range(4):
            qk += [X("buffer_load_dwordx2 %s, %s, %s, %s offen offset:%d" % (vr(XRES[f] + 2 * t, 2), vr(T0 + 1), sr(sX, 4), sr(s_x), 32 * t)),
                   Ex("delay", 6)]
    ff = [x for p in zip(w_touch(sW1, 0, FFB), w_touch(sW3, 0, FFB)) for x in p]
    n3 = (len(ff) + 2) // 3
    St.run(fi("V"), [(qk, fi("M") - 16), (pfq(0, code_touch("S_V"), ff[:n3 - 1]), None)], rd_limit=10 ** 9, flush=False, name="K+M")
    qm = [Ex("delay", 4),
          X("s_lshr_b32 %s, s2, 6" % sr(s_t0), "s_lshl_b32 %s, %s, 14" % (sr(s_t0), sr(s_t0)),
            "s_and_b32 %s, s2, 63" % sr(s_t1), "s_lshl_b32 %s, %s, 8" % (sr(s_t1), sr(s_t1)),
            "s_add_u32 %s, %s, %s" % (sr(s_t0), sr(s_t0), sr(s_t1)), "s_lshl_b32 %s, %s, 6" % (sr(s_t1), sr(s_w)),
            "s_add_u32 %s, %s, %s" % (sr(s_t0), sr(s_t0), sr(s_t1)), "s_add_u32 %s, %s, %d" % (sr(s_t0), sr(s_t0), WS_P2),
            "v_add_u32 %s, %s, v1" % (vr(vA2), sr(s_t0))),
          X("v_and_b32 %s, 15, v1" % vr(vA3), "v_cmp_eq_u32 vcc, 0, %s" % vr(vA3), "v_mov_b32 %s, %s" % (vr(vA3), sr(s_oob)),
            "v_cndmask_b32 %s, %s, %s, vcc" % (vr(vA2), vr(vA3), vr(vA2))),
          X("buffer_store_dwordx4 %s, %s, %s, 0 offen sc1" % (vr(TX, 4), vr(vA2), sr(sWS, 4)), tag="g2"),
          X("s_and_b32 %s, s2, 7" % sr(s_t0), "s_lshl_b32 %s, %s, 11" % (sr(s_t0), sr(s_t0)),
            "s_add_u32 %s, %s, %d" % (sr(s_t0), sr(s_t0), WS_CNT + 128 * 128),
            "v_lshl_add_u32 %s, v1, 7, %s" % (vr(vA2), sr(s_t0)),
            "v_cmp_gt_u32 vcc, 16, v0",
            "v_cndmask_b32 %s, %s, %s, vcc" % (vr(vA2), vr(vA3), vr(vA2))),
          Ex("delay", 80), Ex("wtag", "g2"), Ex("bar"), X(*signal_ops(vA2))]
    St.run(fi("Q"), [(pfq(fi("V"), code_touch("S_Q"), ff[n3 - 1:2 * n3 - 1]), None), (qm, None), (k_final(), None)], rd_limit=10 ** 9, flush=False, name="V")
    qh = [Ex("at", fi("Q") + 16), X(*halo_poll_addr(1)), X(*poll_issue(vPD, vPA)), Ex("delay", 40),
          Ex("fn", lambda E: poll_check(E, vPD, vPA, vPE), c=2), X(*halo_fetch(0), tag="hkf", m0=True)]
    R = Rec()
    h0_addr(R, 128, 32, T0 + 2)
    qh += [X(*R.l), X(*poll_issue(vPD, vPA)), Ex("delay", 40), Ex("fn", lambda E: poll_check(E, vPD, vPA, vPE), c=2), Ex("bar")]
    St.run(fi("O"), [(pfq(fi("Q"), code_touch("T_attn", 2), ff[2 * n3 - 1:], 80), None), (qh, None), (v_final(), None)], name="Q")
    E.label("T_attn")
    stamp(E, "Q done")
    attention(E)
    stamp(E, "attn done")
    rest(E, St, ix, fi)
    finish(E)
    write(E, dst)


X1K = U
NL2R, VAR = RT, RT + 2


def team_counter(E, cadd, expect):
    E.op("s_add_u32 %s, %s, %d" % (sr(s_t1), sr(s_w), cadd))
    E.ops(cnt_line(0, s_t1, 5))
    E.ops(lane0_addr(s_t0, vPA))
    E.op("v_mov_b32 %s, 0" % vr(vPE))
    E.op("v_writelane_b32 %s, %d, 0" % (vr(vPE), expect))


def g_final(aset, elems):
    q = []
    tmp = U + 16
    for b in range(0, len(elems), 4):
        grp = elems[b:b + 4]
        e = [tmp + (b % 8) + i for i in range(4)]
        q += ["v_mul_f32 %s, %s, %s" % (vr(e[i]), vr(NL2R + f), vr(a)) for i, (f, a) in enumerate(grp)]
        q += ["v_exp_f32 %s, %s" % (vr(e[i]), vr(e[i])) for i in range(4)]
        q += ["v_fma_f32 %s, %s, %s, %s" % (vr(e[i]), vr(e[i]), vr(VAR + f), vr(VAR + f)) for i, (f, a) in enumerate(grp)]
        q += ["v_rcp_f32 %s, %s" % (vr(e[i]), vr(e[i])) for i in range(4)]
        q += ["v_mul_f32 %s, %s, %s" % (vr(a), vr(a), vr(e[i])) for i, (f, a) in enumerate(grp)]
    return singles(q)


def g_elems(aset, ts=(0, 1, 2, 3)):
    return [(f, acc_reg(aset, f, t) + r) for f in range(2) for t in ts for r in range(4)]


def pack8(a):
    return ["v_cvt_pk_bf16_f32 %s, %s, %s" % (vr(a + i), vr(a + 2 * i), vr(a + 2 * i + 1)) for i in range(4)]


def u_final(gset, j, tag):
    q = [X("s_add_u32 %s, %s, %d" % (sr(s_pt), sr(s_hb), 4096 * j))]
    for f in range(2):
        for u in range(2):
            a, g = acc_reg(2, f, 2 * u), acc_reg(gset, f, 2 * u)
            q += singles(["v_mul_f32 %s, %s, %s" % (vr(a + i), vr(a + i), vr(g + i)) for i in range(8)] + pack8(a))
            q.append(X("buffer_store_dwordx4 %s, %s, %s, %s offen offset:%d sc1" % (vr(a, 4), vr(vL16), sr(sWS, 4), sr(s_pt), 2048 * u + 1024 * f), tag=tag))
    return q


def h_final(tag):
    q = g_final(0, g_elems(0, (0, 1)))
    for f in range(2):
        a, g = acc_reg(0, f, 2), acc_reg(0, f, 0)
        q += singles(["v_mul_f32 %s, %s, %s" % (vr(a + i), vr(a + i), vr(g + i)) for i in range(8)] + pack8(a))
        q.append(X("buffer_store_dwordx4 %s, %s, %s, %s offen offset:%d sc1" % (vr(a, 4), vr(vL16), sr(sWS, 4), sr(s_hh), 1024 * f), tag=tag))
    return q


def hh_loads(slot):
    pat, off = DGRP[slot // 4]
    ks = PAT[pat][slot % 4] + off
    return [X("s_add_u32 %s, %s, %d" % (sr(s_x), sr(s_hx), 2048 * ks))] + \
           [X("buffer_load_dwordx4 %s, %s, %s, %s offen offset:%d sc1" % (XR(slot, f), vr(vL16), sr(sWS, 4), sr(s_x), 1024 * f)) for f in range(2)]


def d_final(aset, j):
    q = [Ex("delay", 3)]
    for f in range(2):
        for u in range(2):
            a = acc_reg(aset, f, 2 * u)
            q += singles(pack8(a))
            q.append(X("buffer_store_dwordx4 %s, %s, %s, %s offen offset:%d sc1" % (vr(a, 4), vr(vL16), sr(sWS, 4), sr(8 + j), 2048 * f + 1024 * u), tag="p%d" % j))
    q += [Ex("delay", opt("PDELAY", 60)), Ex("wtag", "p%d" % j), X(*signal_ops(vA0 + j))]
    return q


def rest(E, St, ix, fi):
    t = T0
    team_counter(E, 0, 16)
    E.wait(vm=0)
    E.ops(signal_ops(vPA))
    stamp(E, "o signalled")
    table_loads(E, WS_P2, 16384, 4096, 8192, WF)
    gl = AC[2]
    E.op("s_lshl_b32 %s, %s, 8" % (sr(s_t0), sr(s_cw)))
    E.op("v_and_b32 %s, 15, v1" % vr(t + 5))
    E.op("v_lshl_add_u32 %s, %s, 4, %s" % (vr(t + 5), vr(t + 5), sr(s_t0)))
    E.op("v_bfe_u32 %s, v1, 4, 1" % vr(t + 4))
    E.op("v_mul_u32_u24 %s, 12288, %s" % (vr(t + 4), vr(t + 4)))
    E.op("v_add_u32 %s, %s, %s" % (vr(t + 5), vr(t + 5), vr(t + 4)))
    for k in range(4):
        E.op("s_mov_b32 %s, 0x%x" % (sr(s_t0), WS_P2 + 16384 * k))
        E.op("buffer_load_dwordx4 %s, %s, %s, %s offen sc1" % (vr(gl + 4 * k, 4), vr(t + 5), sr(sWS, 4), sr(s_t0)))
    E.ops(poll_issue(vPD, vPA))
    XF = AC[1]
    for f in range(2):
        for d in range(8):
            E.op("v_lshlrev_b32 %s, 16, %s" % (vr(XF + 16 * f + 2 * d), vr(XRES[f] + d)))
            E.op("v_and_b32 %s, 0xffff0000, %s" % (vr(XF + 16 * f + 2 * d + 1), vr(XRES[f] + d)))
    table_build(E, WF, False)
    for x in (0, 2):
        E.op("v_pk_add_f32 %s, %s, %s" % (vr(gl + x, 2), vr(gl + x, 2), vr(gl + 4 + x, 2)))
        E.op("v_pk_add_f32 %s, %s, %s" % (vr(gl + 8 + x, 2), vr(gl + 8 + x, 2), vr(gl + 12 + x, 2)))
    for x in (0, 2):
        E.op("v_pk_add_f32 %s, %s, %s" % (vr(gl + x, 2), vr(gl + x, 2), vr(gl + 8 + x, 2)))
    for x in (0, 2):
        E.op("v_cvt_pk_bf16_f32 %s, %s, %s" % (vr(gl + 4 + x), vr(gl + x), vr(gl + x + 1)))
    for x in (0, 2):
        E.op("v_lshlrev_b32 %s, 16, %s" % (vr(gl + x), vr(gl + 4 + x)))
        E.op("v_and_b32 %s, 0xffff0000, %s" % (vr(gl + x + 1), vr(gl + 4 + x)))
    E.op("v_and_b32 %s, 0x1f0, %s" % (vr(t + 5), vr(vL16)))
    E.op("v_add_u32 %s, %d, %s" % (vr(t + 5), GT, vr(t + 5)))
    E.op("ds_write_b128 %s, %s" % (vr(t + 5), vr(gl, 4)))
    E.op("v_and_b32 %s, 48, v1" % vr(vA3))
    E.op("v_add_u32 %s, %d, %s" % (vr(vA3), GT, vr(vA3)))
    E.wait(lg=0)
    GA = AC[2]
    for q in range(4):
        E.op("ds_read_b128 %s, %s offset:%d" % (vr(GA + 4 * q, 4), vr(vA3), 64 * q))
    St.preread(16)
    poll_check(E, vPD, vPA, vPE)
    stamp(E, "o seen")
    NX0 = opt("NX0", 16)
    E.loaded, E.mode = set(), "need"
    lx = load_x(E, WS_O, 0, 64)
    for ops in lx[:NX0]:
        E.ops(ops)
    g0 = ix["G0"]
    for q in range(4):
        STAGES[g0 + q].hold = True
    qo = []
    for n in range(NX0, 64):
        qo += [Ex("at", fi("O") + 2 * (n - NX0) + 1), X(*lx[n])]
    qo += [X(*o) for o in code_touch("T_wo", 2)]
    St.run(fi("G0"), [(qo, None)], open_next=False, name="O")
    E.label("T_wo")
    stamp(E, "O done")
    E.op("s_lshl_b32 %s, %s, 12" % (sr(s_t0), sr(s_cw)))
    E.op("s_add_u32 %s, %s, %s" % (sr(s_t0), sr(s_t0), sr(s_OW)))
    E.op("s_add_u32 %s, %s, 0x%x" % (sr(s_x), sr(s_t0), WS_X1))
    for f in range(2):
        for u in range(2):
            a = acc_reg(0, f, 2 * u)
            xf = XF + 16 * f + 8 * u
            for i in range(0, 8, 2):
                E.op("v_pk_fma_f32 %s, %s, %s, %s" % (vr(xf + i, 2), vr(a + i, 2), vr(GA + 8 * u + i, 2), vr(xf + i, 2)))
            d = X1K + 8 * f + 4 * u
            for i in range(4):
                E.op("v_cvt_pk_bf16_f32 %s, %s, %s" % (vr(d + i), vr(xf + 2 * i), vr(xf + 2 * i + 1)))
            E.op("buffer_store_dwordx4 %s, %s, %s, %s offen offset:%d sc1" % (vr(d, 4), vr(vL16), sr(sWS, 4), sr(s_x), 2048 * u + 1024 * f))
    team_counter(E, 4, 16)
    E.wait(vm=0)
    E.ops(signal_ops(vPA))
    stamp(E, "x1 signalled")
    if STOP <= 2:
        return
    St.issue_dma_now(g0)
    St.issue_dma_now(g0 + 1)
    E.ops(poll_issue(vPD, vPA))
    for i in range(4):
        E.op("v_add_u32 %s, %d, %s" % (vr(vDd + i), PAT[0][i] * 65536 - 1024 * i, vr(vD2)))
        E.op("v_add_u32 %s, %d, %s" % (vr(vDe + i), PAT[1][i] * 65536 - 1024 * i, vr(vD2)))
    s_kq, s_cg = 12, 13
    E.op("s_lshr_b32 %s, %s, 2" % (sr(s_kq), sr(s_c)))
    E.op("s_and_b32 %s, %s, 3" % (sr(s_cg), sr(s_c)))
    E.op("s_mul_i32 %s, %s, %d" % (sr(s_t0), sr(s_c), 7 * 2048))
    E.op("s_add_u32 %s, %s, %s" % (sr(s_t0), sr(s_t0), sr(s_HW)))
    E.op("s_add_u32 %s, %s, 0x%x" % (sr(s_t0), sr(s_t0), WS_HH))
    E.op("s_bitcmp1_b32 %s, 0" % sr(s_c))
    E.op("s_cselect_b32 %s, 2048, 0" % sr(s_t1))
    E.op("s_cselect_b32 %s, 0, %d" % (sr(s_t2), 6 * 2048))
    E.op("s_add_u32 %s, %s, %s" % (sr(s_hb), sr(s_t0), sr(s_t1)))
    E.op("s_add_u32 %s, %s, %s" % (sr(s_hh), sr(s_t0), sr(s_t2)))
    E.op("s_mul_i32 %s, %s, %d" % (sr(s_hx), sr(s_kq), 28 * 2048))
    E.op("s_add_u32 %s, %s, %s" % (sr(s_hx), sr(s_hx), sr(s_HW)))
    E.op("s_add_u32 %s, %s, 0x%x" % (sr(s_hx), sr(s_hx), WS_HH))
    E.op("s_mul_i32 s14, %s, %d" % (sr(s_kq), 896 * 2048))
    E.op("s_lshl_b32 %s, %s, 9" % (sr(s_t0), sr(s_cg)))
    E.op("s_add_u32 s14, s14, %s" % sr(s_t0))
    E.op("s_lshr_b32 s15, %s, 12" % sr(s_OW))
    for j in range(4):
        E.op("s_add_u32 %s, %s, %d" % (sr(s_t1), sr(s_kq), j + 1))
        E.op("s_and_b32 %s, %s, 3" % (sr(s_t1), sr(s_t1)))
        E.op("s_lshl_b32 %s, %s, 7" % (sr(s_t0), sr(s_t1)))
        E.op("s_add_u32 %s, s14, %s" % (sr(s_bd4 + j), sr(s_t0)))
        E.op("s_lshl_b32 %s, %s, 2" % (sr(s_t1), sr(s_t1)))
        E.op("s_add_u32 %s, %s, %s" % (sr(16 + j), sr(s_t1), sr(s_cg)))
        E.op("s_add_u32 %s, s15, %s" % (sr(s_t0), sr(16 + j)))
        E.op("s_mul_i32 %s, %s, 12288" % (sr(s_t0), sr(s_t0)))
        E.op("s_add_u32 %s, %s, 0x%x" % (sr(8 + j), sr(s_t0), WS_PART + (4096 * j if j < 3 else 0)))
    ones = AC[2] + 8
    for i in range(4):
        E.op("v_mov_b32 %s, 0x3f803f80" % vr(ones + i))
    poll_check(E, vPD, vPA, vPE)
    stamp(E, "x1 seen")
    vsum = [AC[2] + 12, AC[2] + 16]
    vsq = [AC[2] + 20, AC[2] + 24]
    E.loaded = set()
    lx = load_x(E, WS_X1, 0, 64)
    for ops in lx[:NX0]:
        E.ops(ops)
    for n in range(64):
        if n + NX0 < 64:
            E.ops(lx[n + NX0])
        if n == 64 - NX0:
            St.issue_dma_now(g0 + 2)
        f, x = n & 1, ar(4 * n, 4)
        E.op("v_mfma_f32_16x16x32_bf16 %s, %s, %s, %s" % (vr(vsum[f], 4), vr(ones, 4), x, "0" if n < 2 else vr(vsum[f], 4)))
        E.op("v_mfma_f32_16x16x32_bf16 %s, %s, %s, %s" % (vr(vsq[f], 4), x, x, "0" if n < 2 else vr(vsq[f], 4)))
    stamp(E, "x1 loaded")
    row_consts(E, vsum, vsq)
    for f in range(2):
        E.op("v_mul_f32 %s, 0xbfb8aa3b, %s" % (vr(NL2R + f), vr(RC + f)))
        E.op("v_mul_f32 %s, %s, %s" % (vr(VAR + f), vr(TX + f), vr(TX + f)))
    j2 = code_touch("S_G0")
    modulate(E, lambda n: E.ops(j2.pop(0)) if j2 else None)
    stamp(E, "mod2 done")
    STAGES[g0 + 3].hold = False
    E.op("s_and_b32 %s, %s, 12" % (sr(s_t1), sr(s_c)))
    E.op("s_add_u32 %s, %s, %s" % (sr(s_t1), sr(s_t1), sr(s_w)))
    E.ops(cnt_line(0, s_t1, 6))
    E.ops(lane0_addr(s_t0, vA0))
    E.op("s_add_u32 %s, %s, 128" % (sr(s_t0), sr(s_t0)))
    E.ops(lane0_addr(s_t0, vA1))
    E.op("v_writelane_b32 %s, 4, 0" % vr(vPE))
    St.preread(16)
    BIG = 10 ** 9
    dl = Ex("delay", 3)
    w2t = w_touch(sW2, 0, FFB)
    h2 = (len(w2t) + 1) // 2
    pq = lambda a, b, jobs=[]: (pfq(fi(a), code_touch("S_" + b), jobs), None)
    St.run(fi("U0"), [pq("G0", "U0", w2t[:h2])], rd_limit=BIG, flush=False, name="G0")
    _, c = St.run(fi("G1"), [pq("U0", "G1"), ([dl] + g_final(0, g_elems(0)), None)], rd_limit=BIG, flush=False, name="U0", carry=True)
    St.run(fi("U1"), [pq("G1", "U1", w2t[h2:]), (c + [dl] + u_final(0, 0, "h0"), fi("U1"))], rd_limit=BIG, flush=False, name="G1")
    _, c = St.run(fi("H"), [pq("U1", "H"), ([dl] + g_final(1, g_elems(1)), None)], rd_limit=BIG, flush=False, name="U1", carry=True)
    St.run(fi("G2"), [pq("H", "G2"), (c + [dl] + u_final(1, 1, "h1"), fi("G2"))], rd_limit=BIG, flush=False, name="H")
    St.run(fi("U2"), [pq("G2", "U2"), ([dl] + h_final("h2") + [Ex("delay", 40), Ex("wtag", "h2"), X(*signal_ops(vA0))], fi("U2"))],
           rd_limit=BIG, flush=False, name="G2")
    qx = [Ex("at", fi("U2") + 8), X(*poll_issue(vPD, vA0)), Ex("delay", 40), Ex("fn", lambda E: poll_check(E, vPD, vA0, vPE), c=2)]
    for sl in range(20):
        qx += [Ex("at", fi("U2") + 4 * (sl + 1))] + hh_loads(sl)
    E.loaded, E.mode = set(), "avoid"
    St.run(fi("D0"), [pq("U2", "D0"), (qx, None), ([dl] + g_final(1, g_elems(1)), fi("D0"))], rd_limit=BIG, flush=False, name="U2")
    E.mode = "need"
    if STOP <= 3:
        for e in u_final(1, 2, "h3"):
            E.ops(e.val)
        return
    ql = [dl] + u_final(1, 2, "h3") + [Ex("delay", opt("HDELAY", 30)), Ex("wtag", "h3"), X(*signal_ops(vA1)), X(*poll_issue(vPD, vA1)),
                                      Ex("delay", 24), Ex("fn", lambda E: poll_check(E, vPD, vA1, vPE), c=2)]
    for sl in range(20, 28):
        ql += hh_loads(sl)
    for j in range(3):
        ql.append(X(*(cnt_line(0, 16 + j, 1) + ["s_lshl_b32 %s, %s, 7" % (sr(s_t1), sr(s_w)),
                                                 "s_add_u32 %s, %s, %s" % (sr(s_t0), sr(s_t0), sr(s_t1))] + lane0_addr(s_t0, vA0 + j))))
    St.run(fi("D1"), [pq("D0", "D1"), (ql, fi("D0") + 79)], rd_limit=BIG, flush=False, name="D0")
    St.run(fi("D2"), [pq("D1", "D2"), (d_final(0, 0), fi("D2"))], rd_limit=BIG, flush=False, name="D1")
    St.run(fi("D3"), [pq("D2", "D3"), (d_final(1, 1), fi("D3"))], rd_limit=BIG, flush=False, name="D2")
    GB = RT
    qf = [X(*(cnt_line(0, 19, 1) + ["s_lshl_b32 %s, %s, 7" % (sr(s_t1), sr(s_w)),
                                    "s_add_u32 %s, %s, %s" % (sr(s_t0), sr(s_t0), sr(s_t1))] + lane0_addr(s_t0, vPA))),
          X("v_writelane_b32 %s, 3, 0" % vr(vPE))]
    qf += [X("ds_read_b128 %s, %s offset:%d" % (vr(GB + 4 * q, 4), vr(vA3), 256 + 64 * q)) for q in range(4)]
    qf += singles(["v_and_b32 %s, 15, v1" % vr(t),
                   "v_lshlrev_b32 %s, 11, %s" % (vr(t), vr(t)),
                   "v_bfe_u32 %s, v1, 4, 1" % vr(t + 1),
                   "v_lshl_add_u32 %s, %s, 5, %s" % (vr(t), vr(t + 1), vr(t)),
                   "v_bfe_u32 %s, v1, 5, 1" % vr(t + 1),
                   "v_lshl_add_u32 %s, %s, 4, %s" % (vr(t), vr(t + 1), vr(t))])
    St.run(len(St.items), [(d_final(2, 2), len(St.items)), (qf, None)], name="D3")
    stamp(E, "D done")
    poll_spin(E, vPD, vPA, vPE)
    PR = [AC[1], AC[1] + 16, U + 16]
    for j in range(3):
        E.op("s_add_u32 %s, s11, %d" % (sr(s_t0), 4096 * j))
        for q in range(4):
            E.op("buffer_load_dwordx4 %s, %s, %s, %s offen offset:%d sc1" % (vr(PR[j] + 4 * q, 4), vr(vL16), sr(sWS, 4), sr(s_t0), 1024 * q))
    stamp(E, "part seen")
    E.op("s_add_u32 %s, %s, %s" % (sr(s_x), sr(s_OW), sr(s_bo)))
    E.op("s_add_u32 %s, %s, 32768" % (sr(s_pt), sr(s_x)))
    up = AC[2]
    for f in range(2):
        for u in range(2):
            q = 2 * f + u
            for d in range(4):
                E.op("v_lshlrev_b32 %s, 16, %s" % (vr(up + 8 * q + 2 * d), vr(X1K + 4 * q + d)))
                E.op("v_and_b32 %s, 0xffff0000, %s" % (vr(up + 8 * q + 2 * d + 1), vr(X1K + 4 * q + d)))
    w8 = WF
    for j in range(3):
        for q in range(4):
            a = AC[0] + 8 * q
            w = w8 + 8 * q
            for d in range(4):
                E.op("v_lshlrev_b32 %s, 16, %s" % (vr(w + 2 * d), vr(PR[j] + 4 * q + d)))
                E.op("v_and_b32 %s, 0xffff0000, %s" % (vr(w + 2 * d + 1), vr(PR[j] + 4 * q + d)))
            for i in range(0, 8, 2):
                E.op("v_pk_add_f32 %s, %s, %s" % (vr(a + i, 2), vr(a + i, 2), vr(w + i, 2)))
    for f in range(2):
        for u in range(2):
            q = 2 * f + u
            a = AC[0] + 8 * q
            for i in range(0, 8, 2):
                E.op("v_pk_fma_f32 %s, %s, %s, %s" % (vr(a + i, 2), vr(a + i, 2), vr(GB + 8 * u + i, 2), vr(up + 8 * q + i, 2)))
            E.ops(pack8(a))
            E.op("v_permlane16_swap_b32 %s, %s" % (vr(a), vr(a + 2)))
            E.op("v_permlane16_swap_b32 %s, %s" % (vr(a + 1), vr(a + 3)))
            E.op("buffer_store_dwordx4 %s, %s, %s, %s offen offset:%d" % (vr(a, 4), vr(t), sr(sOUT, 4), sr(s_pt if f else s_x), 64 * u))
```

```python
import struct
from asmlib import Asm, Ins, TRANS


def f32hex(x):
    return "0x%08x" % struct.unpack("<I", struct.pack("<f", x))[0]


def vr(b, n=1):
    return "v%d" % b if n == 1 else "v[%d:%d]" % (b, b + n - 1)


def ar(b, n=1):
    return "a%d" % b if n == 1 else "a[%d:%d]" % (b, b + n - 1)


def sr(b, n=1):
    return "s%d" % b if n == 1 else "s[%d:%d]" % (b, b + n - 1)


class Em:
    def __init__(self):
        self.A = Asm()
        self.lq = []
        self.vq = []
        self.now = 0
        self.age = 7
        self.tail = []
        self.uid = 0
        self.junk = set()
        self.loaded = set()
        self.mode = None

    def label(self, n):
        self.A.label(n)

    def raw(self, t):
        self.A.raw(t)

    def nlines(self):
        return len(self.A.lines)

    @staticmethod
    def _need(q, regs):
        need = None
        for i, e in enumerate(q):
            if e[0] & regs:
                need = len(q) - 1 - i
        return need

    def pending(self, text):
        ins = Ins(text)
        regs = ins.src | ins.dst
        return self._need(self.lq, regs), self._need(self.vq, regs)

    def wait(self, lg=None, vm=None):
        if lg is not None and lg >= len(self.lq):
            lg = None
        if vm is not None and vm >= len(self.vq):
            vm = None
        if lg is None and vm is None:
            return
        parts = []
        if vm is not None:
            vm = min(vm, 63)
            parts.append("vmcnt(%d)" % vm)
            self.vq = self.vq[len(self.vq) - vm:] if vm else []
        if lg is not None:
            lg = min(lg, 15)
            parts.append("lgkmcnt(%d)" % lg)
            self.lq = self.lq[len(self.lq) - lg:] if lg else []
        self.A.op("s_waitcnt " + " ".join(parts))

    def force_wait(self, lg=False, vm=False):
        parts = []
        if vm:
            parts.append("vmcnt(0)")
            self.vq = []
        if lg:
            parts.append("lgkmcnt(0)")
            self.lq = []
        self.A.op("s_waitcnt " + " ".join(parts))

    def vm_count(self, tag):
        need = None
        for i, e in enumerate(self.vq):
            if e[1] == tag:
                need = len(self.vq) - 1 - i
        return need

    def wait_tag(self, tag):
        self.wait(vm=self.vm_count(tag))

    def op(self, text, tag=None, batch=False):
        ins = Ins(text)
        ins.dst = ins.dst - self.junk
        regs = ins.src | ins.dst
        if ins.kind == "mfma" and self.mode:
            xs = {r for r in ins.src if r[0] == "a"}
            if self.mode == "need":
                assert xs <= self.loaded, "X fragment not loaded yet: " + text
            else:
                assert not (xs & self.loaded), "X fragment already overwritten: " + text
        if ins.kind == "vmem":
            self.loaded |= {r for r in ins.dst if r[0] == "a"}
        lg = self._need(self.lq, regs)
        vm = self._need(self.vq, regs)
        if lg is not None and batch:
            young = sum(1 for e in self.lq if self.now - e[2] < self.age)
            lg = min(lg, young)
        self.wait(lg, vm)
        self.A.op(text)
        if ins.kind == "ds":
            self.lq.append((set(ins.dst), tag, self.now))
        elif ins.kind == "vmem":
            self.vq.append((set(ins.dst), tag, self.now))
        elif ins.kind == "smem":
            raise ValueError("use raw A.op for scalar loads")

    def ops(self, lst):
        for t in lst:
            self.op(t)

    def newlabel(self, base):
        self.uid += 1
        return "%s_%d" % (base, self.uid)


def cost(t):
    mn = t.split()[0]
    if mn.endswith(":"):
        return 0
    if mn in TRANS:
        return 2
    if mn.startswith(("buffer_", "global_")):
        return 2
    if mn.startswith("ds_write"):
        return 4
    return 1


class Ex:
    def __init__(self, kind, val=None, tag=None, m0=False, c=None):
        self.kind, self.val, self.tag, self.m0 = kind, val, tag, m0
        if kind == "ops":
            self.cost = sum(cost(t) for t in val) if c is None else c
            self.lds = any(t.startswith("ds_") for t in val)
        else:
            self.cost = {"wtag": 1, "fn": c or 1}.get(kind, 0)
            self.lds = False


def X(*ops, **kw):
    return Ex("ops", list(ops), **kw)


class Stage:
    def __init__(self, name):
        self.name = name
        self.dma = []
        self.items = []
        self.hold = False
        self.issued = False
        self.barred = False


class Stream:
    def __init__(self, E, stages, wf, nfr, low=8, high=None, dma_gap=5, dma_start=1):
        self.E = E
        self.stages = stages
        self.wf, self.nfr = wf, nfr
        self.low = low
        self.high = high or 2 * (nfr - 1)
        self.dma_gap, self.dma_start = dma_gap, dma_start
        self.items = []
        for si, st in enumerate(stages):
            for (mf, rd) in st.items:
                self.items.append((si, mf, rd))
        self.first_item = {}
        for i, it in enumerate(self.items):
            self.first_item.setdefault(it[0], i)
        self.cur = 0
        self.rd = 0
        self.dq = []
        self.m0_busy = False
        self.last_dma = -99
        self.nbar = 0
        self.stamp_fn = None
        self.pre_fn = None
        self.novm = False
        self.maxrr = 99
        self.rr = 0
        self.stat = []

    def queue_dma(self, si):
        if si >= len(self.stages):
            return
        st = self.stages[si]
        if st.issued or st.hold:
            return
        st.issued = True
        for (pre, loads) in st.dma:
            for j, l in enumerate(loads):
                self.dq.append(((pre if j == 0 else []) + [l], "W%d" % si, j == 0, j == len(loads) - 1))

    def issue_dma_now(self, si, groups=None):
        assert not self.m0_busy
        st = self.stages[si]
        if not hasattr(st, "left"):
            st.left = list(st.dma)
        n = len(st.left) if groups is None else groups
        for (pre, loads) in st.left[:n]:
            for t in pre:
                self.E.op(t)
            for l in loads:
                self.E.op(l, tag="W%d" % si)
        st.left = st.left[n:]
        if not st.left:
            st.issued = True

    def flush_dma(self):
        for (ops, tag, o, c) in self.dq:
            for t in ops:
                self.E.op(t, tag=tag)
        self.dq = []
        self.m0_busy = False

    def _rdtext(self, n):
        it = self.items[n >> 1]
        reg = self.wf + 4 * ((n >> 1) % self.nfr) + 2 * (n & 1)
        return it[2][n & 1].replace("%W", vr(reg, 2))

    def barrier(self, si):
        E = self.E
        st = self.stages[si]
        assert st.issued and not any(e[1] == "W%d" % si for e in self.dq), "DMA of stage %s not issued" % st.name
        if self.pre_fn:
            self.pre_fn(si)
        E.wait(lg=0, vm=None if self.novm else E.vm_count("W%d" % si))
        if self.stamp_fn:
            self.stamp_fn(si)
        E.A.op("s_barrier")
        st.barred = True
        self.nbar += 1
        self.queue_dma(si + 3)
        self.last_dma = E.now - self.dma_gap + self.dma_start

    def can_read(self, limit, inpair):
        n = self.rd
        if n >= 2 * limit:
            return False
        done = self.cur if not inpair else self.cur
        return (n >> 1) - self.nfr < done

    def preread(self, cnt):
        for _ in range(cnt):
            si = self.items[self.rd >> 1][0]
            if not self.stages[si].barred:
                self.barrier(si)
            assert (self.rd >> 1) - self.nfr < self.cur
            self.E.op(self._rdtext(self.rd))
            self.rd += 1

    def run(self, end_item, queues, rd_limit=None, open_next=True, flush=True, name="", carry=False):
        E = self.E
        rd_limit = end_item if rd_limit is None else min(rd_limit, len(self.items))
        qs = [dict(q=list(q), dl=dl, until=-1, bar=None) for q, dl in queues]
        E.label("S_" + name.replace("+", "_"))
        l0 = E.nlines()
        nm = 0
        over = 0
        next_stage = self.items[end_item][0] if end_item < len(self.items) else None

        def head(s, draining):
            while s["q"]:
                e = s["q"][0]
                if e.kind == "bar":
                    if s["bar"] is None:
                        s["bar"] = self.nbar
                    if self.nbar > s["bar"]:
                        s["bar"] = None
                        s["q"].pop(0)
                        continue
                    return None
                if e.kind == "delay":
                    s["until"] = E.now + e.val
                    s["q"].pop(0)
                    continue
                if e.kind == "at":
                    if self.cur >= e.val:
                        s["q"].pop(0)
                        continue
                    return None
                if E.now < s["until"]:
                    return None
                if e.m0 and self.m0_busy:
                    return None
                if e.lds and draining:
                    return None
                return e
            return None

        def emit_ex(e):
            if e.kind == "ops":
                for t in e.val:
                    if t.endswith(":"):
                        E.label(t[:-1])
                    else:
                        E.op(t, tag=e.tag)
            elif e.kind == "wtag":
                E.wait_tag(e.val)
            elif e.kind == "fn":
                e.val(E)

        while self.cur < end_item:
            si, mf, rdt = self.items[self.cur]
            assert self.rd >= 2 * self.cur + 2, "fragment not read in time"
            wreg = vr(self.wf + 4 * (self.cur % self.nfr), 4)
            for j, m in enumerate(mf):
                E.op(m.replace("%W", wreg), batch=True)
                nm += 1
                last = (j == len(mf) - 1)
                if last:
                    self.cur += 1
                E.now += 1
                budget = 2
                if last and self.cur < end_item:
                    nx = self.items[self.cur][1][0].replace("%W", vr(self.wf + 4 * (self.cur % self.nfr), 4))
                    if self.rd >= 2 * self.cur + 2 and any(p is not None for p in E.pending(nx)):
                        budget -= 1
                for s in qs:
                    if s["dl"] is not None and s["q"]:
                        gaps = 2 * (s["dl"] - self.cur)
                        need = sum(e.cost for e in s["q"]) + sum(sum(cost(t) for t in d[0]) for d in self.dq)
                        if need > 0.72 * gaps:
                            budget += 1
                        if need > 1.6 * gaps:
                            budget += 1
                        break
                rd0 = self.rd
                while budget > 0:
                    base = 2 * self.cur + (0 if last else 1)
                    lead = self.rd - base
                    want_bar = None
                    if self.rd < 2 * rd_limit:
                        rs = self.items[self.rd >> 1][0]
                        if not self.stages[rs].barred:
                            want_bar = rs
                    elif open_next and next_stage is not None and not self.stages[next_stage].barred \
                            and self.rd >= 2 * end_item and self.stages[next_stage].issued:
                        want_bar = next_stage
                    draining = want_bar is not None
                    if draining:
                        aged = all(E.now - e[2] >= 5 for e in E.lq)
                        mine = any(d[1] == "W%d" % want_bar for d in self.dq)
                        if (aged or lead <= 4) and not mine:
                            self.barrier(want_bar)
                            budget -= 2
                            continue
                    rd_ok = (not draining) and self.can_read(rd_limit, not last)
                    if rd_ok and lead < self.low:
                        E.op(self._rdtext(self.rd))
                        self.rd += 1
                        budget -= 1
                        continue
                    if self.dq and (E.now - self.last_dma >= self.dma_gap or draining) and \
                            (budget >= 2 or len(self.dq[0][0]) > 1):
                        ops, tag, o, c = self.dq[0]
                        if len(ops) > 1:
                            self.m0_busy = True
                            E.op(ops[0])
                            self.dq[0] = (ops[1:], tag, o, c)
                            budget -= 1
                            continue
                        E.op(ops[0], tag=tag)
                        self.dq.pop(0)
                        self.m0_busy = not c
                        self.last_dma = E.now
                        budget -= 2
                        continue
                    got = None
                    for s in qs:
                        e = head(s, draining)
                        if e is not None and (e.cost <= budget or budget >= 2):
                            got = (s, e)
                            break
                    if got:
                        n0 = E.nlines()
                        emit_ex(got[1])
                        got[0]["q"].pop(0)
                        budget -= max(got[1].cost, E.nlines() - n0)
                        continue
                    if rd_ok and lead < self.high and not (self.rd > rd0 and self.rr >= self.maxrr):
                        E.op(self._rdtext(self.rd))
                        self.rd += 1
                        budget -= 1
                        continue
                    break
                self.rr = self.rr + 1 if self.rd - rd0 >= 2 else 0
                if budget < 0:
                    over -= budget
            for s in qs:
                if s["dl"] is not None and self.cur >= s["dl"] and s["q"]:
                    left = sum(e.cost for e in s["q"])
                    print("   [sched] %s: deadline flush of %d slots at item %d" % (name, left, self.cur))
                    self._flush(s, emit_ex)
        left = [sum(e.cost for e in s["q"]) for s in qs]
        print("   [sched] %-10s mfma %d lines %d left %s dq %d" % (name, nm, E.nlines() - l0, left, len(self.dq)))
        if flush:
            for s in qs:
                head(s, True)
            self.flush_dma()
            if open_next and next_stage is not None and not self.stages[next_stage].barred and self.stages[next_stage].issued:
                self.barrier(next_stage)
                self.flush_dma()
            for s in qs:
                self._flush(s, emit_ex)
            return None
        if not carry:
            assert all(e.kind in ("delay", "at") for s in qs for e in s["q"]), "extras left over"
        return [s["q"] for s in qs]

    def _flush(self, s, emit_ex):
        for e in s["q"]:
            if e.kind == "bar":
                assert s["bar"] is not None and self.nbar > s["bar"], "flush across a pending barrier marker"
                s["bar"] = None
            elif e.kind in ("delay", "at"):
                pass
            else:
                if e.m0 and self.m0_busy:
                    self.flush_dma()
                emit_ex(e)
        s["q"] = []
```

```python
import os
import sys

sys.path.insert(0, os.path.dirname(os.path.abspath(__file__)))
from m3lib import *

NAME = "adaLN_cond__sliding_local_dilated__glu_gated_swiglu__prompt"
L = NAME + "_kernel"
S, D, F = 2048, 1024, 3584
KB, MB = 1 << 10, 1 << 20
DBG = os.environ.get("DBG", "").split(",")
STOP = int(os.environ.get("STOP", "99"))


def opt(name, default):
    return type(default)(os.environ.get(name, default))


WS_CNT = 0
WS_P1 = 512 * KB
WS_P2 = 576 * KB
WS_HALO = 1 * MB
WS_O = 2 * MB
WS_X1 = 6 * MB
WS_HH = 10 * MB
WS_PART = 25 * MB
WS_STAMP = 64 * MB
WS_SIZE = 72 * MB
OOB = 0x7ffffff0
LIMIT = opt("LIMIT", 1 << 18)

MISC = 131072
TD = MISC
TE = MISC + 8704
CS = MISC + 12800
GT = MISC + 13312
XCH = MISC + 16384

sX, sQKV, sWO, sW1, sW3, sW2, sWH, sWM, sWS, sOUT, sT = 28, 32, 36, 40, 44, 48, 52, 56, 60, 64, 68
s_w, s_rb, s_c, s_cw, s_LW, s_d, s_t0, s_t1, s_t2, s_cnt = 72, 73, 74, 75, 76, 77, 78, 79, 80, 81
s_bq, s_bo, s_bf, s_bh, s_bm, s_bd = 82, 83, 84, 85, 86, 87
s_OW, s_HW, s_blk, s_x = 88, 89, 90, 91
s_st = 92
s_oob = 96
s_pc = 0
s_pf = 3
s_bd4 = 97
s_hb, s_hh, s_hx, s_pt = 4, 5, 6, 7
s_msk = 4

T0 = 2
aW = [[10, 11, 12, 13], [14, 15, 16, 17]]
aH = [[18, 19], [20, 21]]
vDq, vD2, vDf, vDh, vDm = 22, 26, 30, 34, 38
vDd, vDe = 38, 42
vL16 = 46
vST0, vST1 = 47, 48
vPA, vPE, vPD, vONE = 49, 50, 51, 52
vA0, vA1, vA2, vA3 = 53, 54, 55, 56
vJUNK = 57
vPF, vCP = 8, 9
RC = 58
RT = 60
CM = 68
TX = 76
WF, NFR = 80, 12
AC = [128, 160, 192]
U = 224


def XR(ks, f, n=4, o=0):
    return ar(8 * ks + 4 * f + o, n)


def srd(E, d, lo, size):
    E.op("s_mov_b32 s%d, s%d" % (d, lo))
    E.op("s_mov_b32 s%d, s%d" % (d + 1, lo + 1))
    E.op("s_mov_b32 s%d, 0x%x" % (d + 2, size))
    E.op("s_mov_b32 s%d, 0x20000" % (d + 3))


NSTAMP = [0]
STAMP_NAMES = []


def stamp(E, name):
    if "stamp" not in DBG:
        return
    i = NSTAMP[0]
    NSTAMP[0] += 1
    STAMP_NAMES.append(name)
    assert i < 64
    E.wait(lg=0)
    E.A.op("s_memtime s[%d:%d]" % (s_st, s_st + 1))
    E.A.op("s_memrealtime s[%d:%d]" % (s_st + 2, s_st + 3))
    E.A.op("s_waitcnt lgkmcnt(0)")
    E.op("v_writelane_b32 %s, s%d, %d" % (vr(vST0), s_st, i))
    E.op("v_writelane_b32 %s, s%d, %d" % (vr(vST1), s_st + 2, i))


def rnd_hi(E, v, t):
    E.op("v_cvt_pk_bf16_f32 %s, %s, %s" % (vr(t), vr(v), vr(v)))
    E.op("v_lshlrev_b32 %s, 16, %s" % (vr(v), vr(t)))


def lane0_addr(sreg, v):
    return ["v_mov_b32 %s, %s" % (vr(v), sr(s_oob)), "v_writelane_b32 %s, %s, 0" % (vr(v), sr(sreg))]


def cnt_line(rb_delta, c_expr, idx):
    return ["s_lshl_b32 %s, %s, 4" % (sr(s_t0), sr(s_rb)),
            "s_add_u32 %s, %s, %s" % (sr(s_t0), sr(s_t0), sr(c_expr)),
            "s_lshl_b32 %s, %s, 10" % (sr(s_t0), sr(s_t0)),
            "s_add_u32 %s, %s, %d" % (sr(s_t0), sr(s_t0), WS_CNT + 256 * 128 + idx * 128 + rb_delta * 16 * 1024)]


def signal_ops(vaddr):
    return ["buffer_atomic_add %s, %s, %s, 0 offen sc1" % (vr(vONE), vr(vaddr), sr(sWS, 4))]


def poll_issue(vd, va):
    return ["v_mov_b32 %s, 0" % vr(vd),
            "buffer_atomic_add %s, %s, %s, 0 offen sc0 sc1" % (vr(vd), vr(va), sr(sWS, 4))]


def poll_check(E, vd, va, ve):
    lab = E.newlabel("pl")
    E.op("v_cmp_lt_u32 vcc, %s, %s" % (vr(vd), vr(ve)))
    E.op("s_cbranch_vccnz %s_slow" % lab)
    E.label(lab + "_ok")
    E.tail += [lab + "_slow:", "s_mov_b32 %s, 0" % sr(s_cnt), lab + "_loop:",
               "v_mov_b32 %s, 0" % vr(vd),
               "buffer_atomic_add %s, %s, %s, 0 offen sc0 sc1" % (vr(vd), vr(va), sr(sWS, 4)),
               "s_add_u32 %s, %s, 1" % (sr(s_cnt), sr(s_cnt)),
               "s_waitcnt vmcnt(0)",
               "v_cmp_lt_u32 vcc, %s, %s" % (vr(vd), vr(ve)),
               "s_cbranch_vccz %s_ok" % lab,
               "s_cmp_lt_u32 %s, 0x%x" % (sr(s_cnt), LIMIT),
               "s_cbranch_scc1 %s_loop" % lab,
               "s_branch %s_ok" % lab]


def poll_spin(E, vd, va, ve):
    for t in poll_issue(vd, va):
        E.op(t)
    poll_check(E, vd, va, ve)


def xgroup_reduce_n(E, vs, ts, opn):
    for v, t in zip(vs, ts):
        E.op("v_mov_b32 %s, %s" % (vr(t), vr(v)))
    for v, t in zip(vs, ts):
        E.op("v_permlane32_swap_b32 %s, %s" % (vr(v), vr(t)))
    for v, t in zip(vs, ts):
        E.op("%s %s, %s, %s" % (opn, vr(v), vr(v), vr(t)))
    for v, t in zip(vs, ts):
        E.op("v_mov_b32 %s, %s" % (vr(t), vr(v)))
    for v, t in zip(vs, ts):
        E.op("v_permlane16_swap_b32 %s, %s" % (vr(v), vr(t)))
    for v, t in zip(vs, ts):
        E.op("%s %s, %s, %s" % (opn, vr(v), vr(v), vr(t)))


STAGES = []


def add_stage(name, srd_, vD, sbase, groups, items_fn):
    st = Stage(name)
    slot = len(STAGES) % 4
    for gi, (const, n, vv) in enumerate(groups):
        pre = ["s_add_u32 m0, %s, %d" % (sr(s_LW), slot * 32768 + gi * 4096),
               "s_add_u32 %s, %s, 0x%x" % (sr(s_d), sr(sbase), const)]
        loads = ["buffer_load_dwordx4 %s, %s, %s offen offset:%d lds" % (vr((vv or vD) + i), sr(srd_, 4), sr(s_d), 1024 * i)
                 for i in range(n)]
        if "nodma" in DBG and len(STAGES) > 3:
            continue
        st.dma.append((pre, loads))
    st.items = items_fn(slot)
    STAGES.append(st)
    return st


def rd_std(slot, ksl, t):
    return ["ds_read_b64_tr_b16 %%W, %s offset:%d" % (vr(aW[slot >> 1][t]), (slot & 1) * 32768 + h * 16384 + ksl * 1024)
            for h in range(2)]


def rd_h(slot, ksl, t):
    return ["ds_read_b64_tr_b16 %%W, %s offset:%d" % (vr(aH[slot >> 1][t & 1]), (slot & 1) * 32768 + (t >> 1) * 16384 + h * 8192 + ksl * 1024)
            for h in range(2)]


def acc_reg(s, f, t):
    return AC[s] + 16 * f + 4 * t


def sweep(name, srd_, vD, sbase, pitch, col, aset, swap=False, himg=False, nks=32, gconst=None):
    first = len(STAGES)
    if "samew" in DBG:
        srd_, vD, sbase, pitch, col, gconst = sQKV, vDq, s_bq, 6144, 2048, None
    ks0 = 0
    while ks0 < nks:
        n = min(8, nks - ks0)
        groups = []
        for g0 in range(0, n, 4):
            if gconst:
                groups.append(gconst((ks0 + g0) // 4))
            else:
                groups.append(((ks0 + g0) * 32 * pitch + col, min(4, n - g0), None))

        def items(slot, ks0=ks0, n=n):
            out = []
            for ksl in range(n):
                ks = ks0 + ksl
                for t in range(4):
                    mf = []
                    for f in range(2):
                        a = vr(acc_reg(aset, f, t), 4)
                        ops = (XR(ks, f), "%W") if swap else ("%W", XR(ks, f))
                        mf.append("v_mfma_f32_16x16x32_bf16 %s, %s, %s, %s" % (a, ops[0], ops[1], "0" if ks == 0 else a))
                    out.append((mf, (rd_h if himg else rd_std)(slot, ksl, t)))
            return out
        add_stage("%s.%d" % (name, ks0 // 8), srd_, vD, sbase, groups, items)
        ks0 += n
    return first


def row_consts(E, vsum, vsq):
    t = T0
    E.op("v_and_b32 %s, 3, v1" % vr(t))
    for r in range(1, 4):
        E.op("v_cmp_eq_u32 vcc, %d, %s" % (r, vr(t)))
        for f in range(2):
            E.op("v_cndmask_b32 %s, %s, %s, vcc" % (vr(vsq[f]), vr(vsq[f]), vr(vsq[f] + r)))
    E.op("v_and_b32 %s, 15, v1" % vr(t))
    E.op("v_lshrrev_b32 %s, 2, %s" % (vr(t + 1), vr(t)))
    E.op("v_lshl_add_u32 %s, %s, 4, %s" % (vr(t), vr(t + 1), vr(t)))
    E.op("v_lshlrev_b32 %s, 2, %s" % (vr(t), vr(t)))
    for f in range(2):
        E.op("ds_bpermute_b32 %s, %s, %s" % (vr(vsq[f] + 1), vr(t), vr(vsq[f])))
    for f in range(2):
        E.op("v_mul_f32 %s, %s, %s" % (vr(vsum[f]), f32hex(1.0 / 1024), vr(vsum[f])))
    for f in range(2):
        E.op("v_mul_f32 %s, %s, %s" % (vr(vsum[f] + 1), vr(vsum[f]), vr(vsum[f])))
    for f in range(2):
        E.op("v_mul_f32 %s, %s, %s" % (vr(vsq[f] + 1), f32hex(1.0 / 1024), vr(vsq[f] + 1)))
    finish_consts(E, [vsum[f] for f in range(2)], [vsq[f] + 1 for f in range(2)], [vsum[f] + 1 for f in range(2)],
                  [vsum[f] + 2 for f in range(2)])


def finish_consts(E, mean, ex2, msq, tmp):
    for f in range(2):
        E.op("v_sub_f32 %s, %s, %s" % (vr(ex2[f]), vr(ex2[f]), vr(msq[f])))
    for f in range(2):
        E.op("v_max_f32 %s, 0, %s" % (vr(ex2[f]), vr(ex2[f])))
    for f in range(2):
        rnd_hi(E, ex2[f], tmp[f])
    for f in range(2):
        E.op("v_add_f32 %s, %s, %s" % (vr(ex2[f]), f32hex(1e-5), vr(ex2[f])))
    for f in range(2):
        rnd_hi(E, ex2[f], tmp[f])
    for f in range(2):
        E.op("v_sqrt_f32 %s, %s" % (vr(ex2[f]), vr(ex2[f])))
    for f in range(2):
        E.op("v_sub_f32 %s, 0, %s" % (vr(mean[f]), vr(mean[f])))
    E.op("v_cmp_gt_u32 vcc, 16, v1")
    for f in range(2):
        E.op("v_cvt_pk_bf16_f32 %s, %s, %s" % (vr(tmp[f]), vr(ex2[f]), vr(mean[f])))
    for f in range(2):
        E.op("v_lshlrev_b32 %s, 16, %s" % (vr(TX + f), vr(tmp[f])))
    for f in range(2):
        E.op("v_cndmask_b32 %s, 0, %s, vcc" % (vr(CM + 4 * f), vr(tmp[f])))
        E.op("v_mov_b32 %s, 0" % vr(CM + 4 * f + 1))
        E.op("v_mov_b32 %s, 0" % vr(CM + 4 * f + 2))
        E.op("v_mov_b32 %s, %s" % (vr(CM + 4 * f + 3), vr(CM + 4 * f)))
    for f in range(2):
        E.op("v_rcp_f32 %s, %s" % (vr(RC + f), vr(TX + f)))


def table_loads(E, base, kstride, off_s, off_g, R):
    E.op("v_lshlrev_b32 %s, 4, v0" % vr(T0))
    for which, off in enumerate((off_s, off_g)):
        for k in range(4):
            E.op("s_mov_b32 %s, 0x%x" % (sr(s_t0), base + k * kstride + off))
            E.op("buffer_load_dwordx4 %s, %s, %s, %s offen sc1" % (vr(R + 16 * which + 4 * k, 4), vr(T0), sr(sWS, 4), sr(s_t0)))


def table_build(E, R, nat):
    t = T0
    E.op("v_lshrrev_b32 %s, 3, v0" % vr(t))
    if nat:
        E.op("v_bfe_u32 %s, v0, 1, 2" % vr(t + 1))
        E.op("v_and_b32 %s, 1, v0" % vr(t + 2))
    else:
        E.op("v_and_b32 %s, 3, v0" % vr(t + 1))
        E.op("v_bfe_u32 %s, v0, 2, 1" % vr(t + 2))
    E.op("v_mul_u32_u24 %s, 272, %s" % (vr(t + 3), vr(t)))
    E.op("v_lshl_add_u32 %s, %s, 6, %s" % (vr(t + 3), vr(t + 1), vr(t + 3)))
    E.op("v_lshl_add_u32 %s, %s, 3, %s" % (vr(t + 3), vr(t + 2), vr(t + 3)))
    E.op("v_add_u32 %s, %d, %s" % (vr(t + 3), TD, vr(t + 3)))
    E.op("v_lshlrev_b32 %s, 7, %s" % (vr(t + 4), vr(t)))
    E.op("v_lshl_add_u32 %s, %s, 5, %s" % (vr(t + 4), vr(t + 1), vr(t + 4)))
    E.op("v_lshl_add_u32 %s, %s, 2, %s" % (vr(t + 4), vr(t + 2), vr(t + 4)))
    E.op("v_add_u32 %s, %d, %s" % (vr(t + 4), TE, vr(t + 4)))
    P = R + 32
    for z in (1, 3, 4, 6):
        E.op("v_mov_b32 %s, 0" % vr(P + z))
    for b in (R, R + 16):
        for x in (0, 2):
            E.op("v_pk_add_f32 %s, %s, %s" % (vr(b + x, 2), vr(b + x, 2), vr(b + 4 + x, 2)))
            E.op("v_pk_add_f32 %s, %s, %s" % (vr(b + 8 + x, 2), vr(b + 8 + x, 2), vr(b + 12 + x, 2)))
        for x in (0, 2):
            E.op("v_pk_add_f32 %s, %s, %s" % (vr(b + x, 2), vr(b + x, 2), vr(b + 8 + x, 2)))
    G = R + 16
    for x in (0, 2):
        E.op("v_cvt_pk_bf16_f32 %s, %s, %s" % (vr(G + 4 + x), vr(G + x), vr(G + x + 1)))
    for x in (0, 2):
        E.op("v_lshlrev_b32 %s, 16, %s" % (vr(G + x), vr(G + 4 + x)))
        E.op("v_and_b32 %s, 0xffff0000, %s" % (vr(G + x + 1), vr(G + 4 + x)))
    for r in range(4):
        E.op("v_add_f32 %s, 1.0, %s" % (vr(G + r), vr(G + r)))
    for r in range(4):
        E.op("v_cvt_pk_bf16_f32 %s, %s, %s" % (vr(P + 8 + r), vr(R + r), vr(G + r)))
    E.op("v_lshrrev_b32 %s, 16, %s" % (vr(P + 0), vr(P + 8)))
    E.op("v_and_b32 %s, 0xffff0000, %s" % (vr(P + 2), vr(P + 9)))
    E.op("v_lshrrev_b32 %s, 16, %s" % (vr(P + 5), vr(P + 10)))
    E.op("v_and_b32 %s, 0xffff0000, %s" % (vr(P + 7), vr(P + 11)))
    for r in range(4):
        E.op("ds_write_b64 %s, %s offset:%d" % (vr(t + 3), vr(P + 2 * r, 2), 16 * r))
    E.op("ds_write2_b32 %s, %s, %s offset0:0 offset1:2" % (vr(t + 4), vr(P + 8), vr(P + 9)))
    E.op("ds_write2_b32 %s, %s, %s offset0:4 offset1:6" % (vr(t + 4), vr(P + 10), vr(P + 11)))


def modulate(E, between=None):
    t = T0
    E.op("v_and_b32 %s, 15, v1" % vr(t))
    E.op("v_lshrrev_b32 %s, 2, %s" % (vr(t + 1), vr(t)))
    E.op("v_lshrrev_b32 %s, 4, v1" % vr(t + 2))
    E.op("v_cmp_eq_u32 vcc, %s, %s" % (vr(t + 1), vr(t + 2)))
    E.op("v_lshlrev_b32 %s, 4, %s" % (vr(t + 1), vr(t)))
    E.op("v_mov_b32 %s, 256" % vr(t + 2))
    E.op("v_cndmask_b32 %s, %s, %s, vcc" % (vr(t + 1), vr(t + 2), vr(t + 1)))
    E.op("v_add_u32 %s, %d, %s" % (vr(vA0), TD, vr(t + 1)))
    E.op("v_lshlrev_b32 %s, 3, %s" % (vr(t), vr(t)))
    E.op("v_add_u32 %s, %d, %s" % (vr(vA1), TE, vr(t)))
    NA = 4
    Areg = [AC[0] + 8 * i for i in range(NA)]
    Dreg = [AC[1] + 8 * i for i in range(4)]

    def rd(ks):
        return ["ds_read_b128 %s, %s offset:%d" % (vr(Areg[ks % NA], 4), vr(vA0), 272 * ks),
                "ds_read_b64 %s, %s offset:%d" % (vr(Areg[ks % NA] + 4, 2), vr(vA1), 128 * ks)]

    def post(n):
        d = Dreg[n % 4]
        x = 4 * n
        return ["v_cvt_pk_bf16_f32 %s, %s, %s" % (vr(d), vr(d), vr(d + 1)),
                "v_cvt_pk_bf16_f32 %s, %s, %s" % (vr(d + 1), vr(d + 2), vr(d + 3)),
                "v_cvt_pk_bf16_f32 %s, %s, %s" % (vr(d + 4), vr(d + 4), vr(d + 5)),
                "v_cvt_pk_bf16_f32 %s, %s, %s" % (vr(d + 5), vr(d + 6), vr(d + 7)),
                "v_accvgpr_write_b32 %s, %s" % (ar(x), vr(d)),
                "v_accvgpr_write_b32 %s, %s" % (ar(x + 1), vr(d + 1)),
                "v_accvgpr_write_b32 %s, %s" % (ar(x + 2), vr(d + 4)),
                "v_accvgpr_write_b32 %s, %s" % (ar(x + 3), vr(d + 5))]
    for ks in range(3):
        E.ops(rd(ks))
    for n in range(66):
        pv = post(n - 2) if n >= 2 else []
        if n < 64:
            ks, f = n >> 1, n & 1
            a, d = Areg[ks % NA], Dreg[n % 4]
            ms = ["v_mfma_f32_16x16x16_bf16 %s, %s, %s, 0" % (vr(d, 4), vr(a + 4, 2), vr(CM + 4 * f, 2)),
                  "v_mfma_f32_16x16x16_bf16 %s, %s, %s, 0" % (vr(d + 4, 4), vr(a + 4, 2), vr(CM + 4 * f + 2, 2)),
                  "v_mfma_f32_16x16x16_bf16 %s, %s, %s, %s" % (vr(d, 4), vr(a, 2), XR(ks, f, 2), vr(d, 4)),
                  "v_mfma_f32_16x16x16_bf16 %s, %s, %s, %s" % (vr(d + 4, 4), vr(a + 2, 2), XR(ks, f, 2, 2), vr(d + 4, 4))]
            for j in range(4):
                E.op(ms[j])
                E.ops(pv[2 * j:2 * j + 2])
                if j == 1 and ks + 3 < 32:
                    E.op(rd(ks + 3)[f])
            if between:
                between(n)
        else:
            E.ops(pv)


def load_x(E, base, first, last, nks_stride=None):
    out = []
    for n in range(first, last):
        ops = []
        if n % 4 == 0 or n == first:
            ops.append("s_add_u32 %s, %s, 0x%x" % (sr(s_x), sr(s_OW), base + 4096 * (n // 4)))
        ops.append("buffer_load_dwordx4 %s, %s, %s, %s offen offset:%d sc1" % (ar(4 * n, 4), vr(vL16), sr(sWS, 4), sr(s_x), 1024 * (n % 4)))
        out.append(ops)
    return out


def prologue(E):
    A = E.A
    A.raw(".globl %s" % L)
    A.raw(".p2align 8")
    A.raw(".type %s,@function" % L)
    A.label(L)
    A.op("s_cmp_ge_u32 s2, 256")
    A.op("s_cbranch_scc1 K_end")
    A.op("s_load_dwordx16 s[12:27], s[0:1], 32")
    A.op("s_load_dwordx4 s[4:7], s[0:1], 0")
    A.op("s_load_dwordx2 s[8:9], s[0:1], 16")
    if "stamp" in DBG:
        E.op("v_mov_b32 %s, 0" % vr(vST0))
        E.op("v_mov_b32 %s, 0" % vr(vST1))
    E.op("v_lshrrev_b32 v2, 6, v0")
    E.op("v_and_b32 v1, 63, v0")
    E.op("v_readfirstlane_b32 %s, v2" % sr(s_w))
    mp = opt("MP", 1)
    E.op("s_and_b32 s3, s2, 7")
    E.op("s_lshr_b32 %s, s2, 3" % sr(s_t0))
    E.op("s_and_b32 %s, s3, %d" % (sr(s_c), (1 << mp) - 1))
    E.op("s_lshl_b32 %s, %s, %d" % (sr(s_c), sr(s_c), 4 - mp))
    E.op("s_and_b32 %s, %s, %d" % (sr(s_t1), sr(s_t0), (1 << (4 - mp)) - 1))
    E.op("s_add_u32 %s, %s, %s" % (sr(s_c), sr(s_c), sr(s_t1)))
    E.op("s_lshr_b32 %s, s3, %d" % (sr(s_rb), mp))
    E.op("s_lshl_b32 %s, %s, %d" % (sr(s_rb), sr(s_rb), 1 + mp))
    E.op("s_lshr_b32 %s, %s, %d" % (sr(s_t1), sr(s_t0), 4 - mp))
    E.op("s_add_u32 %s, %s, %s" % (sr(s_rb), sr(s_rb), sr(s_t1)))
    E.op("s_mov_b32 %s, 0x%x" % (sr(s_oob), OOB))
    E.op("v_lshlrev_b32 %s, 4, v1" % vr(vL16))
    E.op("v_mov_b32 %s, 1" % vr(vONE))
    E.op("s_lshl_b32 %s, %s, 13" % (sr(s_LW), sr(s_w)))
    t = T0
    vx = AC[2]
    E.op("s_lshl_b32 %s, %s, 2" % (sr(s_t1), sr(s_rb)))
    E.op("s_add_u32 %s, %s, %s" % (sr(s_t1), sr(s_t1), sr(s_w)))
    E.op("s_lshl_b32 %s, %s, 16" % (sr(s_OW), sr(s_t1)))
    E.op("s_mul_i32 %s, %s, %d" % (sr(s_HW), sr(s_t1), 112 * 2048))
    E.op("v_lshrrev_b32 %s, 3, v1" % vr(t))
    E.op("v_lshlrev_b32 %s, 11, %s" % (vr(t), vr(t)))
    E.op("v_add_u32 %s, %s, %s" % (vr(t), sr(s_OW), vr(t)))
    E.op("v_and_b32 %s, 7, v1" % vr(t + 1))
    E.op("v_lshrrev_b32 %s, 4, v1" % vr(t + 2))
    E.op("v_xor_b32 %s, %s, %s" % (vr(t + 1), vr(t + 1), vr(t + 2)))
    E.op("v_lshl_add_u32 %s, %s, 4, %s" % (vr(vx), vr(t + 1), vr(t)))
    E.op("v_xor_b32 %s, 64, %s" % (vr(vx + 1), vr(vx)))
    E.op("v_add_u32 %s, %d, %s" % (vr(vx + 2), 2 * (8 * 2048 - 1024), vr(vx)))
    E.op("v_add_u32 %s, %d, %s" % (vr(vx + 3), 3 * (8 * 2048 - 1024), vr(vx + 1)))
    E.op("v_add_u32 %s, %d, %s" % (vr(vx + 1), 8 * 2048 - 1024, vr(vx + 1)))
    A.op("s_waitcnt lgkmcnt(0)")
    E.op("s_getpc_b64 s[0:1]")
    E.label("K_pc")
    srd(E, sWS, 26, WS_SIZE)
    srd(E, sX, 4, S * D * 2)
    srd(E, sWM, 20, D * 6 * D * 2)
    stamp(E, "entry")


def code_touch(lab, n=1):
    out = []
    for i in range(n):
        out.append(["s_add_u32 s70, s0, %s - K_pc + %d" % (lab, 8192 * i),
                    "s_addc_u32 s71, s1, 0",
                    "global_load_dword %s, %s, s[70:71]" % (vr(vJUNK), vr(vCP))])
    return out


PFW = opt("PFW", 16)


def w_touch(srd_, start, end):
    out = []
    for o in range(start, end, PFW * 128 * KB):
        o = max(0, min(o, end - PFW * 128 * KB))
        out.append(["s_mov_b32 %s, 0x%x" % (sr(s_pf), o),
                    "buffer_load_dword %s, %s, %s, %s offen" % (vr(vJUNK), vr(vPF), sr(srd_, 4), sr(s_pf))])
    return out


def h_lane_addr(E, dst):
    t = T0
    E.op("v_lshrrev_b32 %s, 2, v1" % vr(t))
    E.op("v_lshlrev_b32 %s, 6, %s" % (vr(t), vr(t)))
    E.op("v_bfe_u32 %s, v1, 1, 1" % vr(t + 1))
    E.op("v_bfe_u32 %s, v1, 4, 1" % vr(t + 2))
    E.op("v_lshl_or_b32 %s, %s, 1, %s" % (vr(t + 1), vr(t + 2), vr(t + 1)))
    E.op("v_lshl_add_u32 %s, %s, 4, %s" % (vr(t), vr(t + 1), vr(t)))
    E.op("v_and_b32 %s, 1, v1" % vr(t + 1))
    E.op("v_lshl_add_u32 %s, %s, 3, %s" % (vr(dst), vr(t + 1), vr(t)))
    E.op("v_xor_b32 %s, 32, %s" % (vr(dst + 1), vr(dst)))


def h_src_lane(E, dst, pitch):
    t = T0
    E.op("v_lshrrev_b32 %s, 2, v1" % vr(t))
    E.op("s_movk_i32 %s, %d" % (sr(s_t2), pitch))
    E.op("v_mul_u32_u24 %s, %s, %s" % (vr(t), sr(s_t2), vr(t)))
    E.op("v_bfe_u32 %s, v1, 4, 1" % vr(t + 1))
    E.op("v_lshlrev_b32 %s, 1, %s" % (vr(t + 1), vr(t + 1)))
    E.op("v_and_b32 %s, 3, v1" % vr(t + 2))
    E.op("v_xor_b32 %s, %s, %s" % (vr(t + 1), vr(t + 1), vr(t + 2)))
    E.op("v_lshl_add_u32 %s, %s, 4, %s" % (vr(dst), vr(t + 1), vr(t)))


def gemv1(E):
    A = E.A
    t = T0
    E.op("s_cmp_lg_u32 %s, 0" % sr(s_w))
    E.op("s_cbranch_scc1 K_notw0")
    E.op("s_bfe_u32 %s, s2, 0x10003" % sr(s_t0))
    E.op("s_and_b32 %s, s2, 7" % sr(s_t1))
    E.op("s_lshl_b32 %s, %s, 1" % (sr(s_t1), sr(s_t1)))
    E.op("s_or_b32 %s, %s, %s" % (sr(s_t0), sr(s_t0), sr(s_t1)))
    E.op("s_and_b32 %s, s2, 0x30" % sr(s_t1))
    E.op("s_or_b32 %s, %s, %s" % (sr(s_blk), sr(s_t0), sr(s_t1)))
    E.op("s_lshr_b32 %s, s2, 6" % sr(s_x))
    vg = AC[0]
    h_src_lane(E, vg, 12288)
    for i in range(1, 4):
        E.op("v_add_u32 %s, %d, %s" % (vr(vg + i), i * (16 * 12288 - 1024), vr(vg)))
    E.op("s_mul_i32 %s, %s, %d" % (sr(s_t0), sr(s_x), 256 * 12288))
    E.op("s_lshl_b32 %s, %s, 6" % (sr(s_t1), sr(s_blk)))
    E.op("s_add_u32 %s, %s, %s" % (sr(s_t0), sr(s_t0), sr(s_t1)))
    srd(E, sT, 18, 2048)
    E.op("s_lshl_b32 %s, %s, 9" % (sr(s_t1), sr(s_x)))
    E.op("v_lshlrev_b32 %s, 3, v1" % vr(t + 3))
    vc = AC[0] + 4
    E.op("buffer_load_dwordx2 %s, %s, %s, %s offen" % (vr(vc, 2), vr(t + 3), sr(sT, 4), sr(s_t1)))
    for q in range(16):
        if q % 4 == 0:
            E.op("s_mov_b32 m0, %d" % (XCH + 1024 * q))
            if q:
                E.op("s_add_u32 %s, %s, %d" % (sr(s_t0), sr(s_t0), 64 * 12288))
        E.op("buffer_load_dwordx4 %s, %s, %s offen offset:%d lds" % (vr(vg + q % 4), sr(sWM, 4), sr(s_t0), 1024 * (q % 4)), tag="g1")
    E.ops(cnt_line(0, s_c, 0))
    E.op("v_lshl_add_u32 %s, v1, 7, %s" % (vr(t + 3), sr(s_t0)))
    E.op("v_cmp_gt_u32 vcc, 8, v1")
    E.op("v_mov_b32 %s, %s" % (vr(t + 4), sr(s_oob)))
    E.op("v_cndmask_b32 %s, %s, %s, vcc" % (vr(t + 3), vr(t + 4), vr(t + 3)))
    E.op("s_and_b32 %s, s2, 127" % sr(s_t0))
    E.op("s_lshl_b32 %s, %s, 7" % (sr(s_t0), sr(s_t0)))
    E.op("s_add_u32 %s, %s, %d" % (sr(s_t0), sr(s_t0), WS_CNT + 128 * 128))
    E.op("v_writelane_b32 %s, %s, 8" % (vr(t + 3), sr(s_t0)))
    E.op("v_mov_b32 %s, 0" % vr(t + 4))
    E.op("buffer_store_dword %s, %s, %s, 0 offen sc1" % (vr(t + 4), vr(t + 3), sr(sWS, 4)))
    c4, e4 = AC[0] + 8, AC[0] + 12
    E.op("v_lshlrev_b32 %s, 16, %s" % (vr(c4), vr(vc)))
    E.op("v_and_b32 %s, 0xffff0000, %s" % (vr(c4 + 1), vr(vc)))
    E.op("v_lshlrev_b32 %s, 16, %s" % (vr(c4 + 2), vr(vc + 1)))
    E.op("v_and_b32 %s, 0xffff0000, %s" % (vr(c4 + 3), vr(vc + 1)))
    for r in range(4):
        E.op("v_mul_f32 %s, 0xbfb8aa3b, %s" % (vr(e4 + r), vr(c4 + r)))
    for r in range(4):
        E.op("v_exp_f32 %s, %s" % (vr(e4 + r), vr(e4 + r)))
    for r in range(4):
        E.op("v_add_f32 %s, 1.0, %s" % (vr(e4 + r), vr(e4 + r)))
    for r in range(4):
        E.op("v_rcp_f32 %s, %s" % (vr(e4 + r), vr(e4 + r)))
    for r in range(4):
        E.op("v_mul_f32 %s, %s, %s" % (vr(c4 + r), vr(c4 + r), vr(e4 + r)))
    E.op("v_cvt_pk_bf16_f32 %s, %s, %s" % (vr(e4), vr(c4), vr(c4 + 1)))
    E.op("v_cvt_pk_bf16_f32 %s, %s, %s" % (vr(e4 + 1), vr(c4 + 2), vr(c4 + 3)))
    E.op("v_lshrrev_b32 %s, 3, v1" % vr(t))
    E.op("v_lshlrev_b32 %s, 6, %s" % (vr(t), vr(t)))
    E.op("v_and_b32 %s, 3, v1" % vr(t + 1))
    E.op("v_lshl_add_u32 %s, %s, 4, %s" % (vr(t), vr(t + 1), vr(t)))
    E.op("v_bfe_u32 %s, v1, 2, 1" % vr(t + 1))
    E.op("v_lshl_add_u32 %s, %s, 3, %s" % (vr(t), vr(t + 1), vr(t)))
    E.op("v_add_u32 %s, %d, %s" % (vr(t), CS, vr(t)))
    E.op("ds_write_b64 %s, %s" % (vr(t), vr(e4, 2)))
    cf = AC[1]
    E.op("v_and_b32 %s, 48, v1" % vr(t + 3))
    E.op("v_add_u32 %s, %d, %s" % (vr(t + 3), CS, vr(t + 3)))
    E.wait(lg=0)
    for ks in range(8):
        E.op("ds_read_b128 %s, %s offset:%d" % (vr(cf + 4 * ks, 4), vr(t + 3), 64 * ks))
    h_lane_addr(E, t + 4)
    E.op("v_add_u32 %s, %d, %s" % (vr(t + 4), XCH, vr(t + 4)))
    E.op("v_add_u32 %s, %d, %s" % (vr(t + 5), XCH, vr(t + 5)))
    E.op("s_lshl_b32 %s, %s, 13" % (sr(s_t0), sr(s_x)))
    E.op("s_lshl_b32 %s, %s, 7" % (sr(s_t1), sr(s_blk)))
    E.op("s_add_u32 %s, %s, %s" % (sr(s_t0), sr(s_t0), sr(s_t1)))
    E.op("s_add_u32 %s, %s, %d" % (sr(s_t0), sr(s_t0), WS_P1))
    E.op("v_and_b32 %s, 15, v1" % vr(t))
    E.op("v_and_b32 %s, 48, v1" % vr(t + 1))
    E.op("v_lshl_add_u32 %s, %s, 6, %s" % (vr(t + 1), vr(t), vr(t + 1)))
    E.op("v_add_u32 %s, %s, %s" % (vr(t + 1), sr(s_t0), vr(t + 1)))
    E.op("v_cmp_gt_u32 vcc, 2, %s" % vr(t))
    E.op("v_mov_b32 %s, %s" % (vr(t + 2), sr(s_oob)))
    E.op("v_cndmask_b32 %s, %s, %s, vcc" % (vr(t + 6), vr(t + 2), vr(t + 1)))
    E.op("s_and_b32 %s, s2, 7" % sr(s_t0))
    E.op("s_lshl_b32 %s, %s, 11" % (sr(s_t0), sr(s_t0)))
    E.op("v_lshl_add_u32 %s, v1, 7, %s" % (vr(t + 1), sr(s_t0)))
    E.op("v_cmp_gt_u32 vcc, 16, v1")
    E.op("v_cndmask_b32 %s, %s, %s, vcc" % (vr(t + 7), vr(t + 2), vr(t + 1)))
    srd(E, sT, 24, 256)
    E.op("v_mov_b32 %s, 0" % vr(vPA))
    E.op("v_cmp_eq_u32 vcc, 1, %s" % vr(t))
    E.wait_tag("g1")
    stamp(E, "g1 landed")
    E.op("buffer_load_dword %s, %s, %s, 0 offen sc1" % (vr(vPD), vr(vPA), sr(sT, 4)))
    wfr = WF
    d0 = U
    for ks in range(8):
        for tp in range(2):
            for h in range(2):
                E.op("ds_read_b64_tr_b16 %s, %s offset:%d" % (vr(wfr + 8 * ks + 4 * tp + 2 * h, 2), vr(t + 4 + tp), 1024 * (2 * ks + h)))
    for ks in range(8):
        for tp in range(2):
            E.op("v_mfma_f32_16x16x32_bf16 %s, %s, %s, %s" % (vr(d0 + 4 * tp, 4), vr(wfr + 8 * ks + 4 * tp, 4), vr(cf + 4 * ks, 4),
                                                             "0" if ks == 0 else vr(d0 + 4 * tp, 4)))
    for r in range(4):
        E.op("v_cndmask_b32 %s, %s, %s, vcc" % (vr(d0 + r), vr(d0 + r), vr(d0 + 4 + r)))
    E.op("buffer_store_dwordx4 %s, %s, %s, 0 offen sc1" % (vr(d0, 4), vr(t + 6), sr(sWS, 4)))
    E.wait(vm=0)
    E.op("s_mov_b32 %s, 0" % sr(s_cnt))
    E.label("K_dbgchk")
    E.op("v_cmp_ne_u32 vcc, 1, %s" % vr(vPD))
    E.op("s_cbranch_vccz K_dbgok")
    E.op("s_sleep 4")
    A.op("buffer_load_dword %s, %s, %s, 0 offen sc1" % (vr(vPD), vr(vPA), sr(sT, 4)))
    E.op("s_add_u32 %s, %s, 1" % (sr(s_cnt), sr(s_cnt)))
    E.op("s_cmp_lt_u32 %s, 0x%x" % (sr(s_cnt), LIMIT))
    A.op("s_waitcnt vmcnt(0)")
    E.op("s_cbranch_scc1 K_dbgchk")
    E.label("K_dbgok")
    A.op(signal_ops(t + 7)[0])
    stamp(E, "h0 signalled")
    E.op("s_branch K_xs")
    E.label("K_notw0")
    A.hist = []
    E.op("s_lshr_b32 %s, s2, 3" % sr(s_t0))
    E.op("s_mul_i32 %s, %s, 3" % (sr(s_t0), sr(s_t0)))
    E.op("s_add_u32 %s, %s, %s" % (sr(s_t0), sr(s_t0), sr(s_w)))
    E.op("s_lshl_b32 %s, %s, 8" % (sr(s_t1), sr(s_t0)))
    E.op("v_lshl_add_u32 %s, v1, 2, %s" % (vr(t), sr(s_t1)))
    A.op("global_load_dword %s, %s, s[0:1]" % (vr(vJUNK), vr(t)))
    if opt("XTOUCH", 1):
        E.op("s_and_b32 %s, %s, 7" % (sr(s_t0), sr(s_c)))
        E.op("s_lshl_b32 %s, %s, 15" % (sr(s_t0), sr(s_t0)))
        E.op("s_lshl_b32 %s, %s, 18" % (sr(s_t1), sr(s_rb)))
        E.op("s_add_u32 %s, %s, %s" % (sr(s_t0), sr(s_t0), sr(s_t1)))
        E.op("s_add_u32 %s, %s, %s" % (sr(s_t1), sr(s_t0), sr(s_LW)))
        E.op("v_lshlrev_b32 %s, 7, v1" % vr(t + 1))
        A.op("buffer_load_dword %s, %s, %s, %s offen" % (vr(vJUNK), vr(t + 1), sr(sX, 4), sr(s_t1)))
        E.op("s_cmp_lg_u32 %s, 3" % sr(s_w))
        E.op("s_cbranch_scc1 K_nx")
        A.op("buffer_load_dword %s, %s, %s, %s offen" % (vr(vJUNK), vr(t + 1), sr(sX, 4), sr(s_t0)))
        E.label("K_nx")
    E.op("s_lshl_b32 %s, s2, 2" % sr(s_t0))
    E.op("s_add_u32 %s, %s, %s" % (sr(s_t0), sr(s_t0), sr(s_w)))
    E.op("s_cmp_lg_u32 %s, 1" % sr(s_t0))
    E.op("s_cbranch_scc1 K_xs")
    E.op("v_lshlrev_b32 %s, 7, v1" % vr(t))
    E.op("v_mov_b32 %s, 0" % vr(t + 1))
    E.op("s_movk_i32 %s, 8192" % sr(s_t0))
    srd(E, sT, 24, 256)
    A.op("buffer_store_dword %s, %s, %s, 0 offen sc1" % (vr(t + 1), vr(t), sr(sWS, 4)))
    A.op("buffer_store_dword %s, %s, %s, %s offen sc1" % (vr(t + 1), vr(t), sr(sWS, 4), sr(s_t0)))
    E.op("v_lshlrev_b32 %s, 8, v1" % vr(t))
    A.op("s_waitcnt vmcnt(0)")
    A.op("buffer_store_dword %s, %s, %s, 0 offen sc1" % (vr(vONE), vr(t), sr(sT, 4)))
    E.label("K_xs")
    A.flush()


def setup_addrs(E):
    t = T0
    srd(E, sQKV, 6, D * 3 * D * 2)
    srd(E, sWO, 8, D * D * 2)
    srd(E, sW1, 12, D * F * 2)
    srd(E, sW3, 14, D * F * 2)
    srd(E, sW2, 16, D * F * 2)
    srd(E, sOUT, 22, S * D * 2)
    E.op("s_cmp_ge_u32 %s, 2" % sr(s_w))
    E.op("s_cselect_b32 s%d, s14, s12" % sWH)
    E.op("s_cselect_b32 s%d, s15, s13" % (sWH + 1))
    E.op("s_mov_b32 s%d, 0x%x" % (sWH + 2, D * F * 2))
    E.op("s_mov_b32 s%d, 0x20000" % (sWH + 3))
    E.op("v_bfe_u32 %s, v1, 2, 3" % vr(t))
    E.op("v_and_b32 %s, 6, %s" % (vr(t + 1), vr(t)))
    E.op("v_bfe_u32 %s, v1, 1, 1" % vr(t + 2))
    E.op("v_xor_b32 %s, %s, %s" % (vr(t + 1), vr(t + 1), vr(t + 2)))
    E.op("v_lshlrev_b32 %s, 4, %s" % (vr(t + 1), vr(t + 1)))
    E.op("v_lshl_add_u32 %s, %s, 7, %s" % (vr(t + 1), vr(t), vr(t + 1)))
    E.op("v_and_b32 %s, 1, v1" % vr(t + 2))
    E.op("v_lshl_add_u32 %s, %s, 3, %s" % (vr(t + 1), vr(t + 2), vr(t + 1)))
    E.op("v_lshrrev_b32 %s, 5, v1" % vr(t + 2))
    E.op("v_lshl_add_u32 %s, %s, 13, %s" % (vr(aW[0][0]), vr(t + 2), vr(t + 1)))
    for q in range(1, 4):
        E.op("v_xor_b32 %s, %d, %s" % (vr(aW[0][q]), 32 * q, vr(aW[0][0])))
    for q in range(4):
        E.op("v_add_u32 %s, 0x10000, %s" % (vr(aW[1][q]), vr(aW[0][q])))
    h_lane_addr(E, aH[0][0])
    for q in range(2):
        E.op("v_add_u32 %s, 0x10000, %s" % (vr(aH[1][q]), vr(aH[0][q])))
    E.op("v_lshrrev_b32 %s, 3, v1" % vr(t))
    E.op("v_and_b32 %s, 6, %s" % (vr(t + 1), vr(t)))
    E.op("v_and_b32 %s, 7, v1" % vr(t + 2))
    E.op("v_xor_b32 %s, %s, %s" % (vr(t + 1), vr(t + 1), vr(t + 2)))
    E.op("v_lshlrev_b32 %s, 4, %s" % (vr(t + 1), vr(t + 1)))
    E.op("s_lshl_b32 %s, %s, 3" % (sr(s_t0), sr(s_w)))
    E.op("v_add_u32 %s, %s, %s" % (vr(t + 2), sr(s_t0), vr(t)))
    for vD, pitch in ((vD2, 2048), (vDf, 7168), (vDm, 12288)):
        E.op("s_movk_i32 %s, %d" % (sr(s_t1), pitch))
        E.op("v_mad_u32_u24 %s, %s, %s, %s" % (vr(vD), vr(t + 2), sr(s_t1), vr(t + 1)))
        for i in range(1, 4):
            E.op("v_add_u32 %s, %d, %s" % (vr(vD + i), i * (32 * pitch - 1024), vr(vD)))
    E.op("s_and_b32 %s, %s, 1" % (sr(s_t0), sr(s_w)))
    E.op("s_lshl_b32 %s, %s, 4" % (sr(s_t0), sr(s_t0)))
    E.op("s_lshr_b32 %s, %s, 1" % (sr(s_t1), sr(s_w)))
    E.op("s_lshl_b32 %s, %s, 2" % (sr(s_t1), sr(s_t1)))
    E.op("s_add_u32 %s, %s, %s" % (sr(s_t1), sr(s_t0), sr(s_t1)))
    E.op("v_and_b32 %s, 4, %s" % (vr(t + 2), vr(t)))
    E.op("v_add3_u32 %s, %s, %s, %s" % (vr(t + 2), vr(t + 2), vr(t), sr(s_t1)))
    E.op("s_movk_i32 %s, 6144" % sr(s_t1))
    E.op("v_mad_u32_u24 %s, %s, %s, %s" % (vr(vDq), vr(t + 2), sr(s_t1), vr(t + 1)))
    for i in range(1, 4):
        E.op("v_add_u32 %s, %d, %s" % (vr(vDq + i), i * (32 * 6144 - 1024), vr(vDq)))
    h_src_lane(E, vDh, 7168)
    E.op("s_mul_i32 %s, %s, 7168" % (sr(s_t0), sr(s_t0)))
    E.op("v_add_u32 %s, %s, %s" % (vr(vDh), sr(s_t0), vr(vDh)))
    for i in range(1, 4):
        E.op("v_add_u32 %s, %d, %s" % (vr(vDh + i), i * (32 * 7168 - 1024), vr(vDh)))
    E.op("s_lshl_b32 %s, %s, 7" % (sr(s_bq), sr(s_c)))
    E.op("s_and_b32 %s, %s, 3" % (sr(s_t0), sr(s_c)))
    E.op("s_lshl_b32 %s, %s, 2" % (sr(s_cw), sr(s_t0)))
    E.op("s_lshr_b32 %s, %s, 2" % (sr(s_t1), sr(s_c)))
    E.op("s_add_u32 %s, %s, %s" % (sr(s_cw), sr(s_cw), sr(s_t1)))
    E.op("s_lshl_b32 %s, %s, 7" % (sr(s_bo), sr(s_cw)))
    E.op("s_mul_i32 %s, %s, 448" % (sr(s_bf), sr(s_c)))
    E.op("s_bitcmp1_b32 %s, 0" % sr(s_c))
    E.op("s_cselect_b32 %s, 0, 384" % sr(s_t0))
    E.op("s_cselect_b32 %s, 64, 0" % sr(s_t1))
    E.op("s_add_u32 %s, %s, %s" % (sr(s_bh), sr(s_bf), sr(s_t0)))
    E.op("s_add_u32 %s, %s, %s" % (sr(s_bf), sr(s_bf), sr(s_t1)))
    E.op("s_lshr_b32 %s, s2, 6" % sr(s_t0))
    E.op("s_mul_i32 %s, %s, %d" % (sr(s_bm), sr(s_t0), 256 * 12288))
    E.op("s_and_b32 %s, s2, 63" % sr(s_t0))
    E.op("s_lshl_b32 %s, %s, 7" % (sr(s_t0), sr(s_t0)))
    E.op("s_add_u32 %s, %s, %s" % (sr(s_bm), sr(s_bm), sr(s_t0)))
    E.op("s_add_u32 %s, %s, 4096" % (sr(s_bm), sr(s_bm)))
    E.op("s_lshl_b32 %s, %s, 11" % (sr(s_t0), sr(s_w)))
    E.op("v_lshl_add_u32 %s, v1, 5, %s" % (vr(vCP), sr(s_t0)))
    E.op("s_lshl_b32 %s, s2, 2" % sr(s_t0))
    E.op("s_add_u32 %s, %s, %s" % (sr(s_t0), sr(s_t0), sr(s_w)))
    E.op("s_mul_i32 %s, %s, %d" % (sr(s_t0), sr(s_t0), PFW * 128))
    E.op("v_lshl_add_u32 %s, v1, 7, %s" % (vr(t), sr(s_t0)))
    E.op("v_cmp_gt_u32 vcc, %d, v1" % PFW)
    E.op("v_mov_b32 %s, %s" % (vr(t + 1), sr(s_oob)))
    E.op("v_cndmask_b32 %s, %s, %s, vcc" % (vr(vPF), vr(t + 1), vr(t)))
    E.op("v_and_b32 %s, 31, v0" % vr(t))
    E.op("v_mul_u32_u24 %s, 272, %s" % (vr(t), vr(t)))
    E.op("v_add_u32 %s, %d, %s" % (vr(t), TD + 256, vr(t)))
    for i in range(4):
        E.op("v_mov_b32 %s, 0" % vr(t + 2 + i))
    E.op("ds_write_b128 %s, %s" % (vr(t), vr(t + 2, 4)))


def x_stream(E):
    t = T0
    vx = AC[2]
    E.op("s_lshl_b32 %s, %s, 15" % (sr(s_x), sr(s_w)))

    def dma(u):
        E.op("s_add_u32 m0, %s, %d" % (sr(s_x), 4096 * (u & 7)))
        E.op("s_movk_i32 %s, %d" % (sr(s_d), 128 * u))
        for e in range(4):
            E.op("buffer_load_dwordx4 %s, %s, %s offen offset:%d lds" % (vr(vx + e), sr(sX, 4), sr(s_d), 1024 * e), tag="x%d" % u)
    for u in range(3):
        dma(u)
    setup_addrs(E)
    for u in range(3, 8):
        dma(u)
    rx = AC[2] + 4
    E.op("v_and_b32 %s, 15, v1" % vr(t))
    E.op("v_lshrrev_b32 %s, 1, %s" % (vr(t + 1), vr(t)))
    E.op("v_lshrrev_b32 %s, 4, v1" % vr(t + 2))
    E.op("v_xor_b32 %s, %s, %s" % (vr(t + 1), vr(t + 1), vr(t + 2)))
    E.op("v_lshlrev_b32 %s, 4, %s" % (vr(t + 1), vr(t + 1)))
    E.op("v_lshl_add_u32 %s, %s, 7, %s" % (vr(t + 1), vr(t), vr(t + 1)))
    E.op("v_add_u32 %s, %s, %s" % (vr(rx), sr(s_x), vr(t + 1)))
    E.op("v_xor_b32 %s, 64, %s" % (vr(rx + 1), vr(rx)))
    ones = AC[2] + 8
    for i in range(4):
        E.op("v_mov_b32 %s, 0x3f803f80" % vr(ones + i))
    vsum = [AC[2] + 12, AC[2] + 16]
    vsq = [AC[2] + 20, AC[2] + 24]

    def stats(u):
        for kk in range(2):
            for f in range(2):
                x = XR(2 * u + kk, f)
                z = (u == 0 and kk == 0)
                E.op("v_mfma_f32_16x16x32_bf16 %s, %s, %s, %s" % (vr(vsum[f], 4), vr(ones, 4), x, "0" if z else vr(vsum[f], 4)))
                E.op("v_mfma_f32_16x16x32_bf16 %s, %s, %s, %s" % (vr(vsq[f], 4), x, x, "0" if z else vr(vsq[f], 4)))
    for u in range(16):
        E.wait_tag("x%d" % u)
        if u == 0:
            stamp(E, "x first")
        for kk in range(2):
            for f in range(2):
                E.op("ds_read_b128 %s, %s offset:%d" % (XR(2 * u + kk, f), vr(rx + kk), 4096 * (u & 7) + 2048 * f))
        if u:
            E.wait(lg=4)
            if u + 7 < 16:
                dma(u + 7)
            stats(u - 1)
    stats(15)
    return vsum, vsq


def h0_addr(E, base_line, expect, t=T0):
    E.op("s_lshr_b32 %s, s2, 4" % sr(s_t0))
    E.op("s_lshl_b32 %s, %s, 7" % (sr(s_t0), sr(s_t0)))
    E.op("s_add_u32 %s, %s, %d" % (sr(s_t0), sr(s_t0), WS_CNT + base_line * 128))
    E.op("v_lshl_add_u32 %s, v1, 11, %s" % (vr(t), sr(s_t0)))
    E.op("v_cmp_gt_u32 vcc, 8, v0")
    E.op("v_mov_b32 %s, %s" % (vr(t + 1), sr(s_oob)))
    E.op("v_cndmask_b32 %s, %s, %s, vcc" % (vr(vPA), vr(t + 1), vr(t)))
    E.op("v_mov_b32 %s, %d" % (vr(t), expect))
    E.op("v_cndmask_b32 %s, 0, %s, vcc" % (vr(vPE), vr(t)))


class Rec:
    def __init__(self):
        self.l = []

    def op(self, t, tag=None):
        self.l.append(t)

    def ops(self, l):
        self.l += l


def singles(ops):
    return [X(t) for t in ops]


def finish(E):
    A = E.A
    E.label("K_fin")
    if "stamp" in DBG:
        E.force_wait(vm=True, lg=True)
        stamp(E, "end")
        E.op("s_lshl_b32 %s, s2, 2" % sr(s_t0))
        E.op("s_add_u32 %s, %s, %s" % (sr(s_t0), sr(s_t0), sr(s_w)))
        E.op("s_lshl_b32 %s, %s, 9" % (sr(s_t0), sr(s_t0)))
        E.op("s_add_u32 %s, %s, 0x%x" % (sr(s_t0), sr(s_t0), WS_STAMP))
        E.op("v_lshlrev_b32 v2, 2, v1")
        E.op("buffer_store_dword %s, v2, %s, %s offen" % (vr(vST0), sr(sWS, 4), sr(s_t0)))
        E.op("buffer_store_dword %s, v2, %s, %s offen offset:256" % (vr(vST1), sr(sWS, 4), sr(s_t0)))
    E.label("K_end")
    A.op("s_endpgm")
    A.hist = []
    for t in E.tail:
        if t.endswith(":"):
            A.label(t[:-1])
        else:
            A.op(t)
    A.label("K_last")
    A.raw(".fill 4096, 4, 0xbf800000")


def write(E, dst):
    ref = open(os.path.join(os.path.dirname(os.path.abspath(__file__)), "..", NAME + ".s.ref")).read()
    head = [l for l in ref.splitlines() if l.startswith(";") and "@launch" not in l]
    out = list(head)
    out.append("; @launch grid=(256,1,1) block=(256,1,1) lds=163840")
    if "stamp" in DBG:
        out.append("; stamps: " + "|".join(STAMP_NAMES))
    out.append('.amdgcn_target "amdgcn-amd-amdhsa--gfx950"')
    out.append(".text")
    out.append("\n".join(l.strip() for l in E.A.lines))
    out.append('.section .rodata,"a"')
    out.append(".p2align 6")
    out.append(".amdhsa_kernel %s" % L)
    out.append("  .amdhsa_next_free_vgpr 512")
    out.append("  .amdhsa_next_free_sgpr 102")
    out.append("  .amdhsa_accum_offset 256")
    out.append("  .amdhsa_group_segment_fixed_size 0")
    out.append("  .amdhsa_kernarg_size 96")
    out.append("  .amdhsa_user_sgpr_count 2")
    out.append("  .amdhsa_user_sgpr_kernarg_segment_ptr 1")
    out.append("  .amdhsa_system_sgpr_workgroup_id_x 1")
    out.append("  .amdhsa_float_denorm_mode_32 3")
    out.append(".end_amdhsa_kernel")
    txt = "\n".join(out) + "\n"
    open(dst, "w").write(txt)
    print("lines %d bytes %d nops %d" % (txt.count("\n"), len(txt), E.A.nops))


if __name__ == "__main__":
    import gen3_body
    gen3_body.main(sys.argv[1] if len(sys.argv) > 1 else os.path.join(os.path.dirname(os.path.abspath(__file__)), "..", NAME + ".s"))
```

```python
import re

TRANS = {"v_exp_f32", "v_log_f32", "v_rcp_f32", "v_rsq_f32", "v_sqrt_f32", "v_sin_f32", "v_cos_f32"}
_REG1 = re.compile(r"^([vsa])(\d+)$")
_REGN = re.compile(r"^([vsa])\[(\d+):(\d+)\]$")


def parse_reg(tok):
    t = tok.strip()
    t = t.lstrip("-")
    if t.startswith("abs(") and t.endswith(")"):
        t = t[4:-1]
    if t.startswith("|") and t.endswith("|"):
        t = t[1:-1]
    m = _REG1.match(t)
    if m:
        return {(m.group(1), int(m.group(2)))}
    m = _REGN.match(t)
    if m:
        return {(m.group(1), i) for i in range(int(m.group(2)), int(m.group(3)) + 1)}
    if t == "vcc":
        return {("s", 106), ("s", 107)}
    if t == "vcc_lo":
        return {("s", 106)}
    if t == "vcc_hi":
        return {("s", 107)}
    if t == "exec":
        return {("x", 0)}
    if t == "m0":
        return {("m", 0)}
    return set()


def split_ops(s):
    out, depth, cur = [], 0, ""
    for ch in s:
        if ch in "[(":
            depth += 1
        elif ch in "])":
            depth -= 1
        if ch == "," and depth == 0:
            out.append(cur.strip())
            cur = ""
        else:
            cur += ch
    if cur.strip():
        out.append(cur.strip())
    return out


class Ins:
    __slots__ = ("text", "kind", "dst", "src", "srcA", "srcB", "srcC", "passes", "trans", "dpp",
                 "perm", "rdlane", "wide_data", "ldsdma", "states", "mn", "sdst_valu")

    def __init__(self, text):
        self.text = text
        body = text.split(";")[0].strip()
        parts = body.split(None, 1)
        mn = parts[0]
        self.mn = mn
        rest = parts[1] if len(parts) > 1 else ""
        ops = split_ops(rest)
        mods = []
        if ops:
            lt = ops[-1].split()
            if len(lt) > 1:
                ops[-1] = lt[0]
                mods = lt[1:]
        self.kind = "other"
        self.dst = set()
        self.src = set()
        self.srcA = self.srcB = self.srcC = set()
        self.passes = 0
        self.trans = False
        self.dpp = False
        self.perm = False
        self.rdlane = False
        self.wide_data = set()
        self.ldsdma = False
        self.states = 1
        self.sdst_valu = set()
        R = [parse_reg(o) for o in ops]
        base = mn.replace("_e32", "").replace("_e64", "").replace("_dpp", "")
        if mn.startswith("v_mfma"):
            self.kind = "mfma"
            self.dst = R[0]
            self.srcA, self.srcB, self.srcC = R[1], R[2], R[3]
            self.src = R[1] | R[2] | R[3]
            self.passes = 8 if "32x32x16" in mn else 4
        elif mn.startswith("v_"):
            self.kind = "valu"
            if base.startswith("v_permlane") and "swap" in base:
                self.dst = R[0] | R[1]
                self.src = R[0] | R[1]
                self.perm = True
            elif base in ("v_add_co_u32", "v_sub_co_u32", "v_addc_co_u32", "v_subb_co_u32"):
                self.dst = R[0] | R[1]
                for r in R[2:]:
                    self.src |= r
            else:
                self.dst = R[0]
                for r in R[1:]:
                    self.src |= r
                if base in ("v_fmac_f32", "v_dot2c_f32_bf16", "v_writelane_b32"):
                    self.src |= R[0]
            if base in ("v_readfirstlane_b32", "v_readlane_b32"):
                self.rdlane = True
            self.trans = base in TRANS
            self.dpp = any(m.startswith(("quad_perm", "row_", "wave_")) for m in mods) or mn.endswith("_dpp")
            self.sdst_valu = {r for r in self.dst if r[0] == "s"}
        elif mn.startswith("s_"):
            self.kind = "salu"
            if mn == "s_nop":
                self.states = int(ops[0], 0) + 1
            elif mn.startswith(("s_cmp", "s_waitcnt", "s_barrier", "s_branch", "s_cbranch", "s_setprio",
                                "s_endpgm", "s_sleep")):
                for r in R:
                    self.src |= r
            elif mn.startswith("s_atomic"):
                self.kind = "smem"
                for r in R:
                    self.src |= r
                if "glc" in mods:
                    self.dst = R[0]
            elif mn.startswith(("s_load", "s_buffer_load")):
                self.kind = "smem"
                self.dst = R[0]
                for r in R[1:]:
                    self.src |= r
            else:
                self.dst = R[0] if R else set()
                for r in R[1:]:
                    self.src |= r
                if "saveexec" in mn:
                    self.dst = self.dst | {("x", 0)}
        elif mn.startswith(("buffer_", "global_")):
            self.kind = "vmem"
            lds = "lds" in mods or "_lds_" in mn
            if "atomic" in mn:
                for r in R:
                    self.src |= r
                if "sc0" in mods:
                    self.dst = R[0]
            elif "load" in mn and not lds:
                self.dst = R[0]
                for r in R[1:]:
                    self.src |= r
            else:
                for r in R:
                    self.src |= r
                if lds:
                    self.ldsdma = True
                    self.src |= {("m", 0)}
                elif "store" in mn and ("x4" in mn or "x3" in mn):
                    self.wide_data = R[0] if mn.startswith("buffer_") else R[1]
        elif mn.startswith("ds_"):
            self.kind = "ds"
            if mn.startswith(("ds_read", "ds_bpermute", "ds_permute", "ds_swizzle")) or "_rtn_" in mn:
                self.dst = R[0]
                for r in R[1:]:
                    self.src |= r
            else:
                for r in R:
                    self.src |= r
        else:
            raise ValueError("unknown instruction: " + text)


def need_states(p, c):
    n = 0
    vdst_p = {r for r in p.dst if r[0] in "va"}
    if p.kind == "valu":
        if c.kind == "mfma" and (vdst_p & c.src):
            n = max(n, 2)
        if c.kind == "valu":
            if c.dpp and (vdst_p & c.src):
                n = max(n, 2)
            if c.perm and (vdst_p & c.src):
                n = max(n, 2)
            if c.rdlane and (vdst_p & c.src):
                n = max(n, 1)
            if p.trans and not c.trans and (vdst_p & (c.src | c.dst)):
                n = max(n, 1)
            if p.sdst_valu & c.src:
                n = max(n, 4 if c.rdlane else 2)
        if p.mn.startswith("v_dot") and (vdst_p & (c.src | c.dst)) and c.kind in ("valu", "vmem", "ds", "mfma"):
            n = max(n, 3)
        if c.kind == "vmem" and (p.sdst_valu & c.src):
            n = max(n, 5)
        if c.kind in ("salu", "smem") and (p.sdst_valu & c.src):
            n = max(n, 4)
    if p.kind == "mfma":
        big = {4: 8, 8: 12}[p.passes]
        if c.kind == "mfma":
            if p.dst & (c.srcA | c.srcB):
                n = max(n, big)
            if p.dst & c.srcC:
                if not (p.dst == c.srcC and p.mn == c.mn):
                    n = max(n, {4: 6, 8: 10}[p.passes])
            elif p.dst & c.dst:
                n = max(n, big)
        elif c.kind in ("valu", "vmem", "ds"):
            if p.dst & (c.src | c.dst):
                n = max(n, big)
        if c.kind == "valu" and (p.srcC & c.dst):
            n = max(n, {4: 3, 8: 7}[p.passes])
    if p.kind == "salu" and (("m", 0) in p.dst) and c.ldsdma:
        n = max(n, 1)
    if p.kind == "vmem" and p.wide_data:
        if p.wide_data & c.dst:
            n = max(n, 2)
    return n


class Asm:
    def __init__(self):
        self.lines = []
        self.hist = []
        self.nops = 0

    def raw(self, s):
        self.lines.append(s)

    def comment(self, s):
        self.lines.append("    ; " + s)

    def _pad_for(self, ins):
        need = 0
        dist = 0
        for p in reversed(self.hist):
            k = need_states(p, ins) - dist
            if k > need:
                need = k
            dist += p.states
            if dist > 24:
                break
        return need

    def op(self, text):
        ins = Ins(text)
        need = self._pad_for(ins)
        while need > 0:
            k = min(need, 16)
            nop = Ins("s_nop %d" % (k - 1))
            self.lines.append("    s_nop %d" % (k - 1))
            self.hist.append(nop)
            self.nops += 1
            need -= k
        self.lines.append("    " + text)
        self.hist.append(ins)
        if len(self.hist) > 64:
            self.hist = self.hist[-40:]
        return ins

    def ops(self, text):
        for l in text.strip().splitlines():
            l = l.strip()
            if l and not l.startswith(";"):
                self.op(l)

    def label(self, name):
        self.lines.append(name + ":")

    def flush(self, n=20):
        self.op("s_nop 15")
        self.op("s_nop 3")

    def mark(self):
        return len(self.lines)

    def check_loop(self, start_mark):
        body = [l.strip() for l in self.lines[start_mark:] if l.startswith("    ") and not l.strip().startswith(";")]
        sim = Asm()
        for l in body:
            sim.hist.append(Ins(l))
        sim.hist = sim.hist[-40:]
        for l in body[:40]:
            ins = Ins(l)
            need = sim._pad_for(ins)
            assert need == 0, "loop back-edge hazard at: %s (need %d)" % (l, need)
            sim.hist.append(ins)

    def text(self):
        return "\n".join(self.lines) + "\n"
```

```python
from gen3 import *
import gen3 as G


DGRP = [(0, 0), (128, 0), (1024, 0), (1152, 0), (3072, 1), (2048, 0), (2176, 0)]
SBF = [s_bq, s_bf, s_bf2]


def build_stages():
    ix = {}

    def mitems(slot):
        out = []
        for ks in range(8):
            a = vr(TX, 4)
            out.append((["v_mfma_f32_16x16x32_bf16 %s, %%W, %s, %s" % (a, vr(AC[1] + 4 * ks, 4), "0" if ks == 0 else a)],
                        ["ds_read_b64_tr_b16 %%W, %s offset:%d" % (vr(vA2), (slot & 1) * 32768 + h * 16384 + ks * 1024) for h in range(2)]))
        return out

    def mstage():
        ix["M"] = len(STAGES)
        add_stage("M", sWM, [(s_bm, 0, 4, vDm), (s_bm, 128 * 12288, 4, vDm)], mitems)
    ix["K"] = sweep("K", sQKV, vDq, s_bq, 6144, 2048, 0, hook=(3, mstage))
    ix["V"] = sweep("V", sQKV, vDq, s_bq, 6144, 4096, 1, swap=True)
    ix["Q"] = sweep("Q", sQKV, vDq, s_bq, 6144, 0, 0)
    ix["O"] = sweep("O", sWO, vD2, s_bo, 2048, 0, 0)
    hst = lambda q: gstages("H", sWH, [(s_bh, 128 * g * 7168, vDh, 4, 4 * g) for g in (2 * q, 2 * q + 1)], himg=True, q0=q)
    ix["G0"] = sweep("G0", sW1, vDf, SBF[0], 7168, 0, 0)
    ix["H0"] = hst(0)
    ix["U0"] = sweep("U0", sW3, vDf, SBF[0], 7168, 0, 2)
    ix["H1"] = hst(1)
    ix["G1"] = sweep("G1", sW1, vDf, SBF[1], 7168, 0, 1)
    ix["H2"] = hst(2)
    ix["U1"] = sweep("U1", sW3, vDf, SBF[1], 7168, 0, 2)
    ix["H3"] = hst(3)
    ix["G2"] = sweep("G2", sW1, vDf, SBF[2], 7168, 0, 0)
    ix["U2"] = sweep("U2", sW3, vDf, SBF[2], 7168, 0, 2)
    DS = (1, 3, 4, 0)
    dg = lambda j, gi: (s_bd4 + j, DGRP[gi][0] * 2048, vD2 if DGRP[gi][1] else vDd, DS[j], 4 * gi)
    ix["DA"] = gstages("DA", sW2, [dg(j, g) for g in range(5) for j in range(3)] +
                       [dg(0, 5), dg(1, 5), dg(0, 6), dg(1, 6), dg(2, 5), dg(2, 6)] + [dg(3, g) for g in range(7)])
    return ix


KF = AC[2]
KP = AC[2] + 16
VP = U
XRES = [AC[2] + 24, U + 24]


def kf(f, hd):
    return KF + 8 * f + 4 * hd


def vp(hd, tau):
    return VP + 6 * (2 * hd + tau)


vHF, vG2, vS2, vCSR, vHW8, vHG8, vXR16, vXR8 = [CM + i for i in range(8)]


def grouped(ops):
    out = []
    for t in ops:
        mn = t.split()[0]
        glue = mn.startswith(("s_cselect", "v_cndmask", "s_addc"))
        if glue:
            out[-1].append(t)
        else:
            out.append([t])
    return [X(*g) for g in out]


def pre_m(mslot):
    t = T0 + 3
    o = ["s_lshl_b32 %s, %s, 5" % (sr(s_t0), sr(s_w)),
         "v_xor_b32 %s, %s, %s" % (vr(vA2), sr(s_t0), vr(aW[mslot >> 1][0])),
         "v_and_b32 %s, 48, v1" % vr(vCSR),
         "v_add_u32 %s, %d, %s" % (vr(vCSR), CS, vr(vCSR))]
    o += ["ds_read_b128 %s, %s offset:%d" % (vr(AC[1] + 4 * ks, 4), vr(vCSR), 64 * ks) for ks in range(8)]
    o += ["s_lshr_b32 %s, s2, 6" % sr(s_t0), "s_lshl_b32 %s, %s, 14" % (sr(s_t0), sr(s_t0)),
          "s_and_b32 %s, s2, 63" % sr(s_t1), "s_lshl_b32 %s, %s, 8" % (sr(s_t1), sr(s_t1)),
          "s_add_u32 %s, %s, %s" % (sr(s_t0), sr(s_t0), sr(s_t1)), "s_lshl_b32 %s, %s, 6" % (sr(s_t1), sr(s_w)),
          "s_add_u32 %s, %s, %s" % (sr(s_t0), sr(s_t0), sr(s_t1)), "s_add_u32 %s, %s, %d" % (sr(s_t0), sr(s_t0), WS_P2),
          "v_add_u32 %s, %s, v1" % (vr(vG2), sr(s_t0)),
          "v_mov_b32 %s, %s" % (vr(t + 1), sr(s_oob)),
          "v_and_b32 %s, 15, v1" % vr(t),
          "v_cmp_eq_u32 vcc, 0, %s" % vr(t),
          "v_cndmask_b32 %s, %s, %s, vcc" % (vr(vG2), vr(t + 1), vr(vG2)),
          "s_and_b32 %s, s2, 7" % sr(s_t0), "s_lshl_b32 %s, %s, 11" % (sr(s_t0), sr(s_t0)),
          "s_add_u32 %s, %s, %d" % (sr(s_t0), sr(s_t0), WS_CNT + 128 * 128),
          "v_lshl_add_u32 %s, v1, 7, %s" % (vr(vS2), sr(s_t0)),
          "v_cmp_gt_u32 vcc, 16, v0",
          "v_cndmask_b32 %s, %s, %s, vcc" % (vr(vS2), vr(t + 1), vr(vS2))]
    return o


def pre_halo():
    t = T0 + 3
    o = ["s_lshl_b32 %s, %s, 4" % (sr(s_t2), sr(s_rb)), "s_add_u32 %s, %s, %s" % (sr(s_t2), sr(s_t2), sr(s_c)),
         "v_lshrrev_b32 %s, 1, %s" % (vr(t), vr(vL16)),
         "s_lshl_b32 %s, %s, 12" % (sr(s_t0), sr(s_w)),
         "s_add_u32 %s, %s, %d" % (sr(s_t0), sr(s_t0), XCH),
         "v_add_u32 %s, %s, %s" % (vr(vXR16), sr(s_t0), vr(vL16)),
         "v_add_u32 %s, %s, %s" % (vr(vXR8), sr(s_t0), vr(t)),
         "v_add_u32 %s, 4096, %s" % (vr(vA0), vr(vXR16)),
         "v_add_u32 %s, 4096, %s" % (vr(vHW8), vr(vXR8)),
         "s_lshl_b32 %s, %s, 12" % (sr(s_t0), sr(s_t2)),
         "s_add_u32 %s, %s, 0x%x" % (sr(s_t0), sr(s_t0), WS_HALO),
         "s_cmp_eq_u32 %s, 3" % sr(s_w),
         "s_cselect_b32 %s, %s, %s" % (sr(s_t1), sr(s_t0), sr(s_oob)),
         "v_add_u32 %s, %s, %s" % (vr(vA1), sr(s_t1), vr(vL16)),
         "v_add_u32 %s, %s, %s" % (vr(vHG8), sr(s_t1), vr(t)),
         "s_sub_u32 %s, %s, 65536" % (sr(s_t0), sr(s_t0)),
         "s_cmp_eq_u32 %s, 0" % sr(s_w),
         "s_cselect_b32 %s, %s, 0" % (sr(s_t1), sr(s_rb)),
         "s_cselect_b32 %s, 0, 16384" % sr(s_hm0),
         "s_add_u32 %s, %s, %d" % (sr(s_hm0), sr(s_hm0), XCH),
         "s_cmp_lg_u32 %s, 0" % sr(s_t1),
         "s_cselect_b32 %s, %s, %s" % (sr(s_t0), sr(s_t0), sr(s_oob)),
         "v_add_u32 %s, %s, %s" % (vr(vHF), sr(s_t0), vr(vL16)),
         "s_lshl_b32 %s, %s, 10" % (sr(s_t2), sr(s_t2)),
         "s_add_u32 %s, %s, %d" % (sr(s_t2), sr(s_t2), WS_CNT + 256 * 128),
         "s_cmp_lg_u32 %s, 0" % sr(s_t1),
         "s_cselect_b32 %s, %s, %s" % (sr(s_oHP), sr(s_t2), sr(s_oT)),
         "s_cselect_b32 %s, 1, 0" % sr(s_eH),
         "s_add_u32 %s, %s, 16384" % (sr(s_t2), sr(s_t2)),
         "s_cmp_eq_u32 %s, 3" % sr(s_w),
         "s_cselect_b32 %s, %s, 15" % (sr(s_t0), sr(s_rb)),
         "s_cmp_lt_u32 %s, 15" % sr(s_t0),
         "s_cselect_b32 %s, %s, %s" % (sr(s_oHS), sr(s_t2), sr(s_oT)),
         "s_cselect_b32 %s, 1, 0" % sr(s_hsv)]
    return o


def k_final():
    q = [Ex("delay", 3)]
    for f in (1, 0):
        for hd in range(2):
            a = acc_reg(0, f, 2 * hd)
            q += singles(["v_mul_f32 %s, %s, %s" % (vr(a + i), vr(RC + f), vr(a + i)) for i in range(8)])
            q += singles(["v_cvt_pk_bf16_f32 %s, %s, %s" % (vr(kf(f, hd) + i), vr(a + 2 * i), vr(a + 2 * i + 1)) for i in range(4)])
        if f == 1:
            for hd in range(2):
                q.append(X("buffer_store_dwordx4 %s, %s, %s, 0 offen offset:%d sc1" % (vr(kf(1, hd), 4), vr(vA1), sr(sWS, 4), 1024 * hd), tag="hk%d" % hd))
                q.append(X("ds_write_b128 %s, %s offset:%d" % (vr(vA0), vr(kf(1, hd), 4), 1024 * hd)))
    return q


def v_final():
    q = [Ex("delay", 3)]
    for f in (1, 0):
        for t in range(4):
            a = acc_reg(1, f, t)
            d = vp(t >> 1, t & 1) + 2 + 2 * f
            q += singles(["v_mul_f32 %s, %s, %s" % (vr(a + r), vr(RT + 4 * f + r), vr(a + r)) for r in range(4)])
            q += singles(["v_cvt_pk_bf16_f32 %s, %s, %s" % (vr(d + i), vr(a + 2 * i), vr(a + 2 * i + 1)) for i in range(2)])
        if f == 1:
            for t in range(4):
                d = vp(t >> 1, t & 1) + 4
                q.append(X("buffer_store_dwordx2 %s, %s, %s, 0 offen offset:%d sc1" % (vr(d, 2), vr(vHG8), sr(sWS, 4), 2048 + 512 * t), tag="hv%d" % t))
                q.append(X("ds_write_b64 %s, %s offset:%d" % (vr(vHW8), vr(d, 2), 2048 + 512 * t)))
    q += [Ex("bar")]
    return q


def halo_fetch(off):
    return ["s_mov_b32 m0, %s" % sr(s_hm0),
            "buffer_load_dwordx4 %s, %s, 0 offen offset:%d sc1 lds" % (vr(vHF), sr(sWS, 4), off),
            "buffer_load_dwordx4 %s, %s, 0 offen offset:%d sc1 lds" % (vr(vHF), sr(sWS, 4), off + 1024)]


def masks(E):
    t = T0
    E.op("v_and_b32 %s, 15, v1" % vr(t))
    E.op("v_lshrrev_b32 %s, 4, v1" % vr(t + 1))
    E.op("v_lshlrev_b32 %s, 2, %s" % (vr(t + 1), vr(t + 1)))
    E.op("v_sub_u32 %s, %s, %s" % (vr(t + 1), vr(t), vr(t + 1)))
    E.op("s_mov_b32 %s, 0x80000001" % sr(s_t0))
    for r in range(4):
        E.op("v_sub_u32 %s, %d, %s" % (vr(t + 2), r - 2, vr(t + 1)))
        E.op("v_and_b32 %s, %s, %s" % (vr(t + 2), sr(s_t0), vr(t + 2)))
        E.op("v_cmp_eq_u32 %s, 0, %s" % (sr(s_msk + 2 * r, 2), vr(t + 2)))
        E.op("v_subrev_u32 %s, %d, %s" % (vr(t + 2), r, vr(t + 1)))
        E.op("v_and_b32 %s, %s, %s" % (vr(t + 2), sr(s_t0), vr(t + 2)))
        E.op("v_cmp_eq_u32 %s, 0, %s" % (sr(s_msk + 8 + 2 * r, 2), vr(t + 2)))
    E.op("s_cmp_eq_u32 %s, 0" % sr(s_OW))
    for r in range(4):
        E.op("s_cselect_b64 %s, 0, %s" % (sr(s_msk + 16 + 2 * r, 2), sr(s_msk + 2 * r, 2)))


def attention(E):
    UN = [(f, hd) for f in range(2) for hd in range(2)]
    Qf = [WF + 4 * u for u in range(4)]
    Pf = [WF + 16 + 4 * u for u in range(4)]
    mx = [WF + 32 + u for u in range(4)]
    tt = [WF + 36 + u for u in range(4)]
    sm = [WF + 40 + 2 * u for u in range(4)]
    Sx = [AC[1] + 8 * u for u in range(4)]
    Ot = [AC[0] + 8 * u for u in range(4)]
    t = T0
    E.op("s_lshl_b32 %s, %s, 1" % (sr(s_eH), sr(s_eH)))
    E.wait_tag("hkf")
    for hd in range(2):
        E.op("ds_read_b128 %s, %s offset:%d" % (vr(KP + 4 * hd, 4), vr(vXR16), 1024 * hd))
    E.wait(lg=0)
    E.ops(poll_issue(s_oHP))
    for f in range(2):
        E.op("v_mov_b32 %s, %s" % (vr(t + 2 + 2 * f), vr(RC + f)))
        E.op("v_mov_b32 %s, %s" % (vr(t + 3 + 2 * f), vr(RC + f)))
    for u, (f, hd) in enumerate(UN):
        a = acc_reg(0, f, 2 * hd)
        for i in range(0, 8, 2):
            E.op("v_pk_mul_f32 %s, %s, %s" % (vr(a + i, 2), vr(a + i, 2), vr(t + 2 + 2 * f, 2)))
    for u, (f, hd) in enumerate(UN):
        a = acc_reg(0, f, 2 * hd)
        for i in range(4):
            E.op("v_cvt_pk_bf16_f32 %s, %s, %s" % (vr(Qf[u] + i), vr(a + 2 * i), vr(a + 2 * i + 1)))
    for u, (f, hd) in enumerate(UN):
        prev = KP + 4 * hd if f == 0 else kf(0, hd)
        E.op("v_mfma_f32_16x16x32_bf16 %s, %s, %s, 0" % (vr(Sx[u] + 4, 4), vr(kf(f, hd), 4), vr(Qf[u], 4)))
        E.op("v_mfma_f32_16x16x32_bf16 %s, %s, %s, 0" % (vr(Sx[u], 4), vr(prev, 4), vr(Qf[u], 4)))
    poll_check(E, s_oHP, 0, sr(s_eH))
    for x in halo_fetch(2048):
        E.op(x, tag="hvf")
    SC = 32 ** -0.5 * 1.4426950408889634
    E.op("s_mov_b32 %s, %s" % (sr(s_t0), f32hex(SC)))
    E.op("s_mov_b32 %s, %s" % (sr(s_t1), f32hex(SC)))
    E.op("v_mov_b32 %s, %s" % (vr(t), f32hex(-1.0e30)))
    for u in range(4):
        for x in range(0, 8, 2):
            E.op("v_pk_mul_f32 %s, %s, %s" % (vr(Sx[u] + x, 2), vr(Sx[u] + x, 2), sr(s_t0, 2)))
    for u, (f, hd) in enumerate(UN):
        s = Sx[u]
        pm = s_msk + 16 if f == 0 else s_msk
        for r in range(4):
            E.op("v_cndmask_b32 %s, %s, %s, %s" % (vr(s + r), vr(t), vr(s + r), sr(pm + 2 * r, 2)))
            E.op("v_cndmask_b32 %s, %s, %s, %s" % (vr(s + 4 + r), vr(t), vr(s + 4 + r), sr(s_msk + 8 + 2 * r, 2)))
    poll8_issue(E, 128 * 128, "h0b", 1)
    for u in range(4):
        s = Sx[u]
        E.op("v_max3_f32 %s, %s, %s, %s" % (vr(mx[u]), vr(s), vr(s + 1), vr(s + 2)))
        E.op("v_max3_f32 %s, %s, %s, %s" % (vr(tt[u]), vr(s + 3), vr(s + 4), vr(s + 5)))
    for u in range(4):
        s = Sx[u]
        E.op("v_max3_f32 %s, %s, %s, %s" % (vr(mx[u]), vr(mx[u]), vr(s + 6), vr(s + 7)))
    for u in range(4):
        E.op("v_max_f32 %s, %s, %s" % (vr(mx[u]), vr(mx[u]), vr(tt[u])))
    xgroup_reduce_n(E, mx, tt, "v_max_f32")
    for u in range(4):
        for x in range(8):
            E.op("v_sub_f32 %s, %s, %s" % (vr(Sx[u] + x), vr(Sx[u] + x), vr(mx[u])))
    for u in range(4):
        for x in range(8):
            E.op("v_exp_f32 %s, %s" % (vr(Sx[u] + x), vr(Sx[u] + x)))
    E.wait_tag("hvf")
    for q in range(4):
        E.op("ds_read_b64 %s, %s offset:%d" % (vr(vp(q >> 1, q & 1), 2), vr(vXR8), 2048 + 512 * q))
    for u in range(4):
        s = Sx[u]
        E.op("v_pk_add_f32 %s, %s, %s" % (vr(sm[u], 2), vr(s, 2), vr(s + 2, 2)))
    for x in (4, 6):
        for u in range(4):
            E.op("v_pk_add_f32 %s, %s, %s" % (vr(sm[u], 2), vr(sm[u], 2), vr(Sx[u] + x, 2)))
    for u in range(4):
        E.op("v_add_f32 %s, %s, %s" % (vr(sm[u]), vr(sm[u]), vr(sm[u] + 1)))
    xgroup_reduce_n(E, sm, tt, "v_add_f32")
    for u in range(4):
        E.op("v_rcp_f32 %s, %s" % (vr(sm[u]), vr(sm[u])))
    for u in range(4):
        E.op("v_mov_b32 %s, %s" % (vr(sm[u] + 1), vr(sm[u])))
    for u in range(4):
        for x in range(0, 8, 2):
            E.op("v_pk_mul_f32 %s, %s, %s" % (vr(Sx[u] + x, 2), vr(Sx[u] + x, 2), vr(sm[u], 2)))
    for u in range(4):
        for d in range(4):
            E.op("v_cvt_pk_bf16_f32 %s, %s, %s" % (vr(Pf[u] + d), vr(Sx[u] + 2 * d), vr(Sx[u] + 2 * d + 1)))
    for u, (f, hd) in enumerate(UN):
        for tau in range(2):
            E.op("v_mfma_f32_16x16x32_bf16 %s, %s, %s, 0" % (vr(Ot[u] + 4 * tau, 4), vr(vp(hd, tau) + 2 * f, 4), vr(Pf[u], 4)))
    E.op("s_lshl_b32 %s, %s, 12" % (sr(s_t0), sr(s_c)))
    E.op("s_add_u32 %s, %s, %s" % (sr(s_t0), sr(s_t0), sr(s_OW)))
    E.op("s_add_u32 %s, %s, 0x%x" % (sr(s_x), sr(s_t0), WS_O))
    for u, (f, hd) in enumerate(UN):
        for d in range(4):
            E.op("v_cvt_pk_bf16_f32 %s, %s, %s" % (vr(Qf[u] + d), vr(Ot[u] + 2 * d), vr(Ot[u] + 2 * d + 1)))
        E.op("buffer_store_dwordx4 %s, %s, %s, %s offen offset:%d sc1" % (vr(Qf[u], 4), vr(vL16), sr(sWS, 4), sr(s_x), 2048 * hd + 1024 * f), tag="o")


FFB = D * F * 2


def pfq(first, code, jobs, span=100, start=6):
    q = [Ex("at", first + 2)] + [X(*o) for o in code]
    if "nopf" in DBG:
        return q
    for i, o in enumerate(jobs):
        q += [Ex("at", first + start + i * span // max(1, len(jobs)))]
        q += [X(t, hol=t.startswith("buffer") and ("%s," % vr(vTF)) not in t) for t in o]
    return q


def tjob(x):
    if x[0] == "o":
        return touch(sWO, vPF, 2048, 0)
    if x[0] == "d":
        return touch(sW2, vPF, 2048, min(int(x[1]) * 2 * MB, 5 * MB))
    if x[0] == "e":
        return touch(sW2, vTH, 1024, int(x[1]) * MB)
    if x[0] == "h":
        return touch(sW1, vTH, 7168, 6144) + touch(sW3, vTH, 7168, 6144)[2:]
    if x[0] == "H":
        return ["s_and_b32 %s, %s, 1024" % (sr(s_pf), sr(s_bq)), "s_sub_u32 %s, 6144, %s" % (sr(s_pf), sr(s_pf))] + \
               ["buffer_load_dword %s, %s, %s, %s offen" % (vr(vJUNK), vr(vTF), sr(m, 4), sr(s_pf)) for m in (sW1, sW3)]
    if x[0] in "AB":
        return ["s_movk_i32 %s, %d" % (sr(s_pf), 2048 * int(x[1])),
                "buffer_load_dword %s, %s, %s, %s offen" % (vr(vJUNK), vr(vTF), sr(sW1 if x[0] == "A" else sW3, 4), sr(s_pf))]
    return touch(sW1 if x[0] == "a" else sW3, vPF, 7168, 2048 * int(x[1]))


def tjobs(key, default):
    out = []
    for ev in opt("T_" + key, default).split(","):
        if ev and "nopf" not in DBG:
            out.append([t for x in ev.split("+") for t in tjob(x)])
    return out


def chk(soff, imm, expect):
    return Ex("fn", lambda E: poll_check(E, soff, imm, expect), c=2)


def main(dst):
    E = Em()
    E.junk = {("v", vJUNK)}
    ix = build_stages()
    St = Stream(E, STAGES, WF, NFR, low=opt("LOW", 20), dma_gap=opt("DGAP", 6))
    E.age = opt("AGE", 6)
    fi = lambda n: St.first_item[ix[n]]
    if "stamp" in DBG:
        heads = {v: k for k, v in ix.items() if k not in ("U0", "G1", "U1", "G2")}
        St.stamp_fn = lambda si: stamp(E, "bar " + heads[si]) if si in heads else None
    if "fine" in DBG:
        St.stamp_fn = lambda si: stamp(E, "bar " + STAGES[si].name)
    if "pre" in DBG:
        St.pre_fn = lambda si: stamp(E, "pre " + STAGES[si].name)
    if "wst" in DBG:
        St.wst = lambda n: stamp(E, n)
    St.novm = "novm" in DBG
    St.maxrr = opt("MAXRR", 1)
    St.hard = opt("HARD", 16)
    St.drain = opt("DRAIN", 5)
    St.hol_len, St.hol_budget = opt("HOL", 130), opt("HOLB", 8)
    prologue(E)
    E.wait(lg=0)
    tq = lambda part: touch(sQKV, vPF, 6144, 2048 * part)
    C3 = opt("C3", 1)
    t3 = lambda part: ["s_movk_i32 %s, %d" % (sr(s_pf), 2048 * part),
                       "buffer_load_dword %s, %s, %s, %s offen" % (vr(vJUNK), vr(vA3), sr(sQKV, 4), sr(s_pf))] if C3 else []
    MEARLY = opt("MEARLY", 0)

    def after():
        table_loads(E, WS_P1, 8192, 0, 4096, WF)
        E.ops(code_touch("S_K")[0] + tq(1) + t3(1))
        if MEARLY:
            St.issue_dma_now(3)
    vsum, vsq = x_stream(E, XRES, after)
    stamp(E, "x done")
    row_consts(E, vsum, vsq)
    E.op("v_and_b32 %s, 48, v1" % vr(T0))
    for r in range(4):
        E.op("v_add_u32 %s, %d, %s" % (vr(T0 + 1 + r), 4 * r, vr(T0)))
    for f in range(2):
        for r in range(4):
            E.op("ds_bpermute_b32 %s, %s, %s" % (vr(RT + 4 * f + r), vr(T0 + 1 + r), vr(RC + f)))
    table_build(E, WF, True)
    E.wait(lg=0)
    E.op("s_barrier")
    stamp(E, "table1")
    dm = lambda st: (lambda: St.issue_dma_now(st, 1))
    to = lambda o: (lambda: E.ops(o))
    seq = [dm(0), dm(0), dm(1), dm(1), dm(2), dm(2)] + ([] if MEARLY else [dm(3), dm(3)]) + [to(tq(2) + t3(2)), to(tq(0) + t3(0))] + [to(o) for o in tjobs("M1", "")]
    M0, MS = opt("MSTART", 4), opt("MSTEP", 5)

    def btw(n):
        if n >= M0 and (n - M0) % MS == 0 and seq:
            seq.pop(0)()
    modulate(E, btw)
    assert not seq
    stamp(E, "mod1 done")
    St.preread(16)
    tw = lambda srd_, r: touch(srd_, vPF, 2048, min(r * 2 * MB, 5 * MB))
    qk = grouped(pre_m(ix["M"] % 4) + pre_halo())
    qm = [Ex("at", fi("M") + 10),
          X("buffer_store_dwordx4 %s, %s, %s, 0 offen sc1" % (vr(TX, 4), vr(vG2), sr(sWS, 4)), tag="g2")]
    St.run(fi("V"), [(pfq(0, code_touch("S_V"), tjobs("K", "o+e0"), start=opt("TS_K", 70), span=60), None), (qm, None), (qk, fi("M") - 16)], rd_limit=10 ** 9, flush=False, name="K")
    qm = [Ex("delay", 20), Ex("wtag", "g2"), Ex("bar"), X(vsignal(vS2)), Ex("at", fi("V") + 40), Ex("bar"), Ex("need", "hk1"), Ex("wtag", "hk1"),
          X(signal(s_oHS, 0, s_hsv))]
    RM = Rec()
    masks(RM)
    St.run(fi("Q"), [(pfq(fi("V"), code_touch("S_Q"), tjobs("V", "a0+e1"), start=opt("TS_V", 30), span=120), None), (qm, None), (k_final(), None),
                     (grouped(RM.l), fi("Q"))], rd_limit=10 ** 9, flush=False, name="V")
    qh = [Ex("bar"), Ex("bar"), Ex("need", "hv3"), Ex("wtag", "hv3"), X(signal(s_oHS, 0, s_hsv)), X(*poll_issue(s_oHP)), Ex("bar"), chk(s_oHP, 0, sr(s_eH)), X(*halo_fetch(0), tag="hkf", m0=True)]
    vf = v_final()
    if "q_nost" in DBG:
        vf = [e for e in vf if not (e.kind == "ops" and e.val[0].startswith("buffer_store"))]
    if "q_nods" in DBG:
        vf = [e for e in vf if not (e.kind == "ops" and e.val[0].startswith("ds_write"))]
    if "q_nofetch" in DBG:
        qh = [e for e in qh if not e.m0]
    if "q_nopoll" in DBG:
        qh = [e for e in qh if not (e.kind == "fn" or (e.kind == "ops" and "atomic" in e.val[-1]))]
    St.run(fi("O"), [(pfq(fi("Q"), code_touch("T_attn", 2), tjobs("Q", "h+e2"), start=opt("TS_Q", 6), span=opt("TP_Q", 160)), None), (qh, None), (vf, None)], name="Q")
    E.label("T_attn")
    stamp(E, "Q done")
    attention(E)
    stamp(E, "attn done")
    rest(E, St, ix, fi)
    finish(E)
    write(E, dst)


X1K = U
NL2R, VAR = RT, RT + 2


def g_final(aset, elems):
    q = []
    tmp = CM
    for b in range(0, len(elems), 4):
        grp = elems[b:b + 4]
        e = [tmp + (b % 8) + i for i in range(4)]
        q += ["v_mul_f32 %s, %s, %s" % (vr(e[i]), vr(NL2R + f), vr(a)) for i, (f, a) in enumerate(grp)]
        q += ["v_exp_f32 %s, %s" % (vr(e[i]), vr(e[i])) for i in range(4)]
        q += ["v_fma_f32 %s, %s, %s, %s" % (vr(e[i]), vr(e[i]), vr(VAR + f), vr(VAR + f)) for i, (f, a) in enumerate(grp)]
        q += ["v_rcp_f32 %s, %s" % (vr(e[i]), vr(e[i])) for i in range(4)]
        q += ["v_mul_f32 %s, %s, %s" % (vr(a), vr(a), vr(e[i])) for i, (f, a) in enumerate(grp)]
    return singles(q)


def g_elems(aset, ts=(0, 1, 2, 3)):
    return [(f, acc_reg(aset, f, t) + r) for f in range(2) for t in ts for r in range(4)]


def pack8(a):
    return ["v_cvt_pk_bf16_f32 %s, %s, %s" % (vr(a + i), vr(a + 2 * i), vr(a + 2 * i + 1)) for i in range(4)]


def u_final(gset, j, tag):
    q = [X("s_lshl_b32 %s, %s, 5" % (sr(s_pt), sr(SBF[j]))), X("s_add_u32 %s, %s, %s" % (sr(s_pt), sr(s_pt), sr(s_hb)))]
    for f in range(2):
        for u in range(2):
            a, g = acc_reg(2, f, 2 * u), acc_reg(gset, f, 2 * u)
            q += singles(["v_mul_f32 %s, %s, %s" % (vr(a + i), vr(a + i), vr(g + i)) for i in range(8)] + pack8(a))
            q.append(X("buffer_store_dwordx4 %s, %s, %s, %s offen offset:%d sc1" % (vr(a, 4), vr(vL16), sr(sWS, 4), sr(s_pt), 2048 * u + 1024 * f), tag=tag))
    return q


def h_final(tag):
    q = g_final(4, g_elems(4, (0, 1)))
    for f in range(2):
        a, g = acc_reg(4, f, 2), acc_reg(4, f, 0)
        q += singles(["v_mul_f32 %s, %s, %s" % (vr(a + i), vr(a + i), vr(g + i)) for i in range(8)] + pack8(a))
        q.append(X("buffer_store_dwordx4 %s, %s, %s, %s offen offset:%d sc1" % (vr(a, 4), vr(vL16), sr(sWS, 4), sr(s_hh), 1024 * f), tag=tag))
    return q


def hh_loads(slot):
    row, half = DGRP[slot // 4]
    ks = (0 if half else row // 32) + slot % 4
    q = []
    if slot % 2 == 0:
        q.append(X("s_add_u32 %s, %s, %d" % (sr(s_x), sr(s_hx2 if half else s_hx), 2048 * ks)))
    return q + [X("buffer_load_dwordx4 %s, %s, %s, %s offen offset:%d sc1" % (XR(slot, f), vr(vL16), sr(sWS, 4), sr(s_x), 2048 * (slot % 2) + 1024 * f))
                for f in range(2)]


def d_final(src, j):
    q = []
    for k in range(4):
        q += singles(pack8(src + 8 * k))
        q.append(X("buffer_store_dwordx4 %s, %s, %s, %s offen offset:%d sc1" % (vr(src + 8 * k, 4), vr(vL16), sr(sWS, 4), sr(8 + j), 1024 * k), tag="p%d" % j))
    return q


s_oH = 24


def late_consts():
    R = Rec()
    s_kq, s_cg = 12, 13
    R.op("s_and_b32 %s, %s, 12" % (sr(s_t1), sr(s_c)))
    for j in (1, 2):
        R.op("s_add_u32 %s, %s, %d" % (sr(s_t0), sr(s_c), j))
        R.op("s_and_b32 %s, %s, 3" % (sr(s_t0), sr(s_t0)))
        R.op("s_add_u32 %s, %s, %s" % (sr(s_t0), sr(s_t0), sr(s_t1)))
        R.op("s_lshl_b32 %s, %s, 7" % (sr(s_t0), sr(s_t0)))
        R.op("s_add_u32 %s, %s, %d" % (sr(SBF[j]), sr(s_t0), 2048 * j))
    R.op("s_lshr_b32 %s, %s, 2" % (sr(s_kq), sr(s_c)))
    R.op("s_and_b32 %s, %s, 3" % (sr(s_cg), sr(s_c)))
    R.op("s_add_u32 %s, %s, 0x%x" % (sr(s_hb), sr(s_HW), WS_HH))
    R.op("s_lshl_b32 %s, %s, 5" % (sr(s_hh), sr(s_bh)))
    R.op("s_add_u32 %s, %s, %s" % (sr(s_hh), sr(s_hh), sr(s_hb)))
    R.op("s_lshl_b32 %s, %s, 14" % (sr(s_hx), sr(s_kq)))
    R.op("s_add_u32 %s, %s, %s" % (sr(s_hx), sr(s_hx), sr(s_hb)))
    R.op("s_lshl_b32 %s, %s, 13" % (sr(s_hx2), sr(s_kq)))
    R.op("s_add_u32 %s, %s, %s" % (sr(s_hx2), sr(s_hx2), sr(s_hb)))
    R.op("s_add_u32 %s, %s, %d" % (sr(s_hx2), sr(s_hx2), 96 * 2048))
    R.op("s_lshl_b32 s14, %s, 18" % sr(s_kq))
    for i in range(4):
        R.op("v_add_u32 %s, s14, %s" % (vr(vDd + i), vr(vD2 + i)))
    R.op("s_lshl_b32 %s, %s, 9" % (sr(s_t0), sr(s_cg)))
    R.op("s_add_u32 s14, s14, %s" % sr(s_t0))
    R.op("s_lshr_b32 s15, %s, 12" % sr(s_OW))
    R.op("s_lshl_b32 s17, %s, 14" % sr(s_rb))
    R.op("s_lshl_b32 %s, %s, 7" % (sr(s_t0), sr(s_w)))
    R.op("s_add_u32 s17, s17, %d" % (WS_CNT + 256 * 128))
    R.op("s_add_u32 s18, s17, %s" % sr(s_t0))
    for j in range(4):
        R.op("s_add_u32 %s, %s, %d" % (sr(s_t1), sr(s_kq), j + 1))
        R.op("s_and_b32 %s, %s, 3" % (sr(s_t1), sr(s_t1)))
        R.op("s_lshl_b32 %s, %s, 7" % (sr(s_t0), sr(s_t1)))
        R.op("s_add_u32 %s, s14, %s" % (sr(s_bd4 + j), sr(s_t0)))
        R.op("s_lshl_b32 %s, %s, 2" % (sr(s_t1), sr(s_t1)))
        R.op("s_add_u32 s16, %s, %s" % (sr(s_t1), sr(s_cg)))
        R.op("s_add_u32 %s, s15, s16" % sr(s_t0))
        R.op("s_mul_i32 %s, %s, 12288" % (sr(s_t0), sr(s_t0)))
        R.op("s_add_u32 %s, %s, 0x%x" % (sr(8 + j), sr(s_t0), WS_PART + (4096 * j if j < 3 else 0)))
        R.op("s_lshl_b32 s16, s16, 10")
        R.op("s_add_u32 %s, s16, s18" % sr(20 + j))
    R.op("s_and_b32 %s, %s, 12" % (sr(s_t1), sr(s_c)))
    R.op("s_add_u32 %s, %s, %s" % (sr(s_t1), sr(s_t1), sr(s_w)))
    R.op("s_lshl_b32 %s, %s, 10" % (sr(s_t1), sr(s_t1)))
    R.op("s_add_u32 %s, %s, s17" % (sr(s_oH), sr(s_t1)))
    return R.l


def rest(E, St, ix, fi):
    t = T0
    BIG = 10 ** 9
    poll8_check(E, 128 * 128, "h0b", 1)
    E.op("s_barrier")
    TR = AC[0]
    table_loads(E, WS_P2, 16384, 4096, 8192, TR)
    gl = AC[2]
    E.op("s_lshl_b32 %s, %s, 8" % (sr(s_t0), sr(s_cw)))
    E.op("v_and_b32 %s, 15, v1" % vr(t + 5))
    E.op("v_lshl_add_u32 %s, %s, 4, %s" % (vr(t + 5), vr(t + 5), sr(s_t0)))
    E.op("v_bfe_u32 %s, v1, 4, 1" % vr(t + 4))
    E.op("v_mul_u32_u24 %s, 12288, %s" % (vr(t + 4), vr(t + 4)))
    E.op("v_add_u32 %s, %s, %s" % (vr(t + 5), vr(t + 5), vr(t + 4)))
    for k in range(4):
        E.op("s_mov_b32 %s, 0x%x" % (sr(s_t0), WS_P2 + 16384 * k))
        E.op("buffer_load_dwordx4 %s, %s, %s, %s offen sc1" % (vr(gl + 4 * k, 4), vr(t + 5), sr(sWS, 4), sr(s_t0)))
    St.preread(16)
    E.wait_tag("o")
    stamp(E, "o acked")
    E.op(signal(s_oT))
    table_build(E, TR, False)
    for x in (0, 2):
        E.op("v_pk_add_f32 %s, %s, %s" % (vr(gl + x, 2), vr(gl + x, 2), vr(gl + 4 + x, 2)))
        E.op("v_pk_add_f32 %s, %s, %s" % (vr(gl + 8 + x, 2), vr(gl + 8 + x, 2), vr(gl + 12 + x, 2)))
    for x in (0, 2):
        E.op("v_pk_add_f32 %s, %s, %s" % (vr(gl + x, 2), vr(gl + x, 2), vr(gl + 8 + x, 2)))
    for x in (0, 2):
        E.op("v_cvt_pk_bf16_f32 %s, %s, %s" % (vr(gl + 4 + x), vr(gl + x), vr(gl + x + 1)))
    for x in (0, 2):
        E.op("v_lshlrev_b32 %s, 16, %s" % (vr(gl + x), vr(gl + 4 + x)))
        E.op("v_and_b32 %s, 0xffff0000, %s" % (vr(gl + x + 1), vr(gl + 4 + x)))
    E.op("v_and_b32 %s, 0x1f0, %s" % (vr(t + 5), vr(vL16)))
    E.op("v_add_u32 %s, %d, %s" % (vr(t + 5), GT, vr(t + 5)))
    E.op("ds_write_b128 %s, %s" % (vr(t + 5), vr(gl, 4)))
    E.ops(poll_issue(s_oT))
    E.op("v_and_b32 %s, 48, v1" % vr(vA3))
    E.op("v_add_u32 %s, %d, %s" % (vr(vA3), GT, vr(vA3)))
    XF = AC[1]
    for f in range(2):
        for d in range(8):
            E.op("v_lshlrev_b32 %s, 16, %s" % (vr(XF + 16 * f + 2 * d), vr(XRES[f] + d)))
            E.op("v_and_b32 %s, 0xffff0000, %s" % (vr(XF + 16 * f + 2 * d + 1), vr(XRES[f] + d)))
    poll_check(E, s_oT, 0, "16")
    stamp(E, "o seen")
    NX0 = opt("NX0", 16)
    E.loaded, E.mode = set(), "need"
    lx = load_x(E, WS_O, 0, 64)
    for ops in lx[:NX0]:
        E.ops(ops)
    GA = AC[2]
    for q in range(4):
        E.op("ds_read_b128 %s, %s offset:%d" % (vr(GA + 4 * q, 4), vr(vA3), 64 * q))
    g0 = ix["G0"]
    for q in range(4):
        STAGES[g0 + q].hold = True
    qo = []
    for n in range(NX0, 64):
        qo += [Ex("at", fi("O") + 2 * (n - NX0) + 1), X(*lx[n])]
    qo += [X(*o) for o in code_touch("T_wo", 2) + tjobs("O", "")]
    ones, vsum, vsq, vst = AC[2] + 16, [AC[2] + 20, AC[2] + 24], [AC[2] + 28, TX], CM
    s_dm = 4
    qe = ["v_mov_b32 %s, 0x3f803f80" % vr(ones + i) for i in range(4)]
    qe += ["v_and_b32 %s, 3, v1" % vr(t)]
    qe += ["v_cmp_eq_u32 %s, %d, %s" % (sr(s_dm + 2 * r - 2, 2), r, vr(t)) for r in range(1, 4)]
    qe += ["s_lshl_b32 %s, %s, 6" % (sr(s_bh), sr(s_c)),
           "s_add_u32 %s, %s, 6144" % (sr(s_bh), sr(s_bh)),
           "s_lshl_b32 %s, %s, 12" % (sr(s_t0), sr(s_cw)),
           "s_add_u32 %s, %s, %s" % (sr(s_t0), sr(s_t0), sr(s_OW)),
           "s_add_u32 s27, %s, 0x%x" % (sr(s_t0), WS_X1),
           "s_lshr_b32 %s, %s, 4" % (sr(s_t0), sr(s_t0)),
           "s_add_u32 %s, %s, 0x%x" % (sr(s_t0), sr(s_t0), WS_ST),
           "s_lshr_b32 s11, %s, 4" % sr(s_OW),
           "s_add_u32 s11, s11, 0x%x" % WS_ST,
           "v_and_b32 %s, 15, v1" % vr(t),
           "v_lshl_add_u32 %s, %s, 4, %s" % (vr(t + 1), vr(t), sr(s_t0)),
           "v_lshrrev_b32 %s, 4, v1" % vr(t + 3),
           "v_lshlrev_b32 %s, 4, %s" % (vr(vA2), vr(t)),
           "v_lshl_add_u32 %s, %s, 10, %s" % (vr(vA2), vr(t + 3), vr(vA2)),
           "v_lshrrev_b32 %s, 2, %s" % (vr(t + 2), vr(t)),
           "v_mov_b32 %s, %s" % (vr(t), sr(s_oob)),
           "v_cmp_eq_u32 vcc, %s, %s" % (vr(t + 2), vr(t + 3)),
           "v_cndmask_b32 %s, %s, %s, vcc" % (vr(vSP), vr(t), vr(t + 1))]
    St.run(fi("G0"), [(qo, None), (grouped(qe), None)], open_next=False, name="O")
    E.label("T_wo")
    stamp(E, "O done")
    for f in range(2):
        for u in range(2):
            a = acc_reg(0, f, 2 * u)
            xf = XF + 16 * f + 8 * u
            for i in range(0, 8, 2):
                E.op("v_pk_fma_f32 %s, %s, %s, %s" % (vr(xf + i, 2), vr(a + i, 2), vr(GA + 8 * u + i, 2), vr(xf + i, 2)))
    for f in range(2):
        for u in range(2):
            xf = XF + 16 * f + 8 * u
            d = X1K + 8 * f + 4 * u
            for i in range(4):
                E.op("v_cvt_pk_bf16_f32 %s, %s, %s" % (vr(d + i), vr(xf + 2 * i), vr(xf + 2 * i + 1)))
            E.op("buffer_store_dwordx4 %s, %s, %s, s27 offen offset:%d sc1" % (vr(d, 4), vr(vL16), sr(sWS, 4), 2048 * u + 1024 * f))
            E.op("v_mfma_f32_16x16x32_bf16 %s, %s, %s, %s" % (vr(vsq[f], 4), vr(d, 4), vr(d, 4), vr(vsq[f], 4) if u else "0"))
            E.op("v_mfma_f32_16x16x32_bf16 %s, %s, %s, %s" % (vr(vsum[f], 4), vr(ones, 4), vr(d, 4), vr(vsum[f], 4) if u else "0"))
    for f in range(2):
        E.op("v_cndmask_b32 %s, %s, %s, %s" % (vr(vst + 2 * f + 1), vr(vsq[f]), vr(vsq[f] + 1), sr(s_dm, 2)))
        for r in (2, 3):
            E.op("v_cndmask_b32 %s, %s, %s, %s" % (vr(vst + 2 * f + 1), vr(vst + 2 * f + 1), vr(vsq[f] + r), sr(s_dm + 2 * r - 2, 2)))
        E.op("v_mov_b32 %s, %s" % (vr(vst + 2 * f), vr(vsum[f])))
    E.op("buffer_store_dwordx4 %s, %s, %s, 0 offen sc1" % (vr(vst, 4), vr(vSP), sr(sWS, 4)), tag="x1")
    St.issue_dma_now(g0)
    mod2_prepare(E)
    E.wait_tag("x1")
    stamp(E, "x1 acked")
    E.op(signal(s_oT, 4096))
    St.issue_dma_now(g0 + 1)
    E.ops(code_touch("S_G0")[0])
    E.ops(poll_issue(s_oT, 4096))
    poll_check(E, s_oT, 4096, "16")
    stamp(E, "x1 seen")
    sl = M2D[0]
    for j in range(4):
        E.op("buffer_load_dwordx4 %s, %s, %s, s11 offen offset:%d sc1" % (vr(sl + 4 * j, 4), vr(vA2), sr(sWS, 4), 256 * j))
    for n in range(16):
        E.ops(raw_load(WS_X1, n))
    for x in (0, 2):
        E.op("v_pk_add_f32 %s, %s, %s" % (vr(sl + x, 2), vr(sl + x, 2), vr(sl + 4 + x, 2)))
        E.op("v_pk_add_f32 %s, %s, %s" % (vr(sl + 8 + x, 2), vr(sl + 8 + x, 2), vr(sl + 12 + x, 2)))
    for x in (0, 2):
        E.op("v_pk_add_f32 %s, %s, %s" % (vr(sl + x, 2), vr(sl + x, 2), vr(sl + 8 + x, 2)))
    xgroup_reduce_n(E, [sl + i for i in range(4)], [sl + 4 + i for i in range(4)], "v_add_f32")
    for i in range(4):
        E.op("v_mul_f32 %s, %s, %s" % (vr(sl + i), f32hex(1.0 / 1024), vr(sl + i)))
    for f in range(2):
        E.op("v_mul_f32 %s, %s, %s" % (vr(sl + 4 + f), vr(sl + 2 * f), vr(sl + 2 * f)))
    finish_consts(E, [sl, sl + 2], [sl + 1, sl + 3], [sl + 4, sl + 5], [CM, CM + 1], cm=False)
    stamp(E, "consts")
    E.mode = None
    j2 = tjobs("M2", "b0")

    def btw2(n):
        if n in (49, 52):
            St.issue_dma_now(g0 + 2, 1)
        if n >= 55 and j2:
            E.ops(j2.pop(0))
    modulate2(E, WS_X1, [CM, CM + 1], btw2)
    for f in range(2):
        E.op("v_mul_f32 %s, 0xbfb8aa3b, %s" % (vr(NL2R + f), vr(RC + f)))
        E.op("v_mul_f32 %s, %s, %s" % (vr(VAR + f), vr(TX + f), vr(TX + f)))
    stamp(E, "mod2 done")
    STAGES[g0 + 3].hold = False
    St.preread(16)
    dl = Ex("delay", 3)
    pq = lambda a, b, jobs=[], n=1: (pfq(fi(a), code_touch("S_" + b, n), jobs, start=opt("TS", 4), span=120), None)
    run = lambda a, b, qs, **kw: St.run(fi(b), qs, rd_limit=BIG, flush=False, name=a, **kw)
    run("G0", "H0", [(pfq(fi("G0"), code_touch("S_H0"), tjobs("G0", "a1+e3"), start=50), None), (grouped(late_consts()), fi("H0"))])
    _, c = run("H0", "H1", [pq("H0", "H1", tjobs("U0", "b1+e4")), ([dl] + g_final(0, g_elems(0)), None)], carry=True)
    run("H1", "H2", [pq("H1", "H2", tjobs("G1", "a2+e5")), (c + [dl] + u_final(0, 0, "h0"), fi("H2"))])
    _, c = run("H2", "H3", [pq("H2", "H3", tjobs("U1", "b2+e6")), ([dl] + g_final(1, g_elems(1)), None)], carry=True)
    run("H3", "U2", [pq("H3", "U2", tjobs("G2", "")),
                     (c + [dl] + u_final(1, 1, "h1") + [Ex("at", fi("G2") + 2)] + h_final("h2"), fi("U2") - 8)])
    NU = opt("NU", 8)
    qx = [Ex("delay", 6), Ex("wtag", "h2"), X(signal(s_oH, 768)), Ex("bar"), Ex("bar"), X(*poll_issue(s_oH, 768)), Ex("bar"), chk(s_oH, 768, "4")]
    for sl_ in range(NU):
        qx += hh_loads(sl_) + [Ex("delay", 3)]
    E.loaded, E.mode = set(), "avoid"
    _, _, c = run("U2", "DA", [pq("U2", "DA", n=2), (qx, fi("DA")), ([dl] + g_final(0, g_elems(0)), None)], carry=True)
    E.mode = "need"
    E.agev = opt("AGEV", 50)
    da = fi("DA")
    qy = []
    for sl_ in range(NU, 20):
        qy += [Ex("at", da + 12 * (sl_ - NU))] + hh_loads(sl_)
    ql = c + [dl] + u_final(0, 2, "h3")
    HDL = opt("HDL", 130)
    ql2 = [Ex("at", da + HDL + 8), Ex("bar"), Ex("wtag", "h3"), X(signal(s_oH, 896)), Ex("bar"), X(*poll_issue(s_oH, 896)),
           Ex("bar"), chk(s_oH, 896, "4")]
    for sl_ in range(20, 28):
        ql2 += hh_loads(sl_)
    d3 = da + 21 * 16
    GB, ID = RT, CM + 8
    qf = [Ex("at", da + HDL + 2)]
    qf += [X("ds_read_b128 %s, %s offset:%d" % (vr(GB + 4 * q, 4), vr(vA3), 256 + 64 * q)) for q in range(4)]
    qf += grouped(["v_and_b32 %s, 15, v1" % vr(t),
                   "v_lshrrev_b32 %s, 2, %s" % (vr(t + 1), vr(t)),
                   "v_lshrrev_b32 %s, 4, v1" % vr(t + 2),
                   "v_and_b32 %s, 1, v1" % vr(t + 3),
                   "v_lshlrev_b32 %s, 4, %s" % (vr(t + 3), vr(t + 3)),
                   "v_mov_b32 %s, 0x3f80" % vr(t + 4),
                   "v_lshlrev_b32 %s, %s, %s" % (vr(t + 3), vr(t + 3), vr(t + 4)),
                   "v_cmp_eq_u32 vcc, %s, %s" % (vr(t + 1), vr(t + 2)),
                   "v_cndmask_b32 %s, 0, %s, vcc" % (vr(t + 3), vr(t + 3)),
                   "v_and_b32 %s, 2, v1" % vr(t + 4),
                   "v_cmp_eq_u32 vcc, 0, %s" % vr(t + 4),
                   "v_cndmask_b32 %s, 0, %s, vcc" % (vr(ID), vr(t + 3)),
                   "v_sub_u32 %s, %s, %s" % (vr(ID + 1), vr(t + 3), vr(ID)),
                   "v_lshlrev_b32 %s, 11, %s" % (vr(t), vr(t)),
                   "v_bfe_u32 %s, v1, 4, 1" % vr(t + 1),
                   "v_lshl_add_u32 %s, %s, 5, %s" % (vr(t), vr(t + 1), vr(t)),
                   "v_bfe_u32 %s, v1, 5, 1" % vr(t + 1),
                   "v_lshl_add_u32 %s, %s, 4, %s" % (vr(t), vr(t + 1), vr(t)),
                   "s_add_u32 s12, %s, %s" % (sr(s_OW), sr(s_bo)),
                   "s_add_u32 s13, s12, 32768",
                   "s_add_u32 s14, s11, 4096",
                   "s_add_u32 s15, s11, 8192"])
    up = AC[2]
    for f in range(2):
        for u in range(2):
            qf.append(X("buffer_load_dwordx4 %s, %s, %s, s27 offen offset:%d sc1" % (vr(AC[0] + 8 * f + 4 * u, 4), vr(vL16), sr(sWS, 4), 2048 * u + 1024 * f)))
    qf.append(Ex("delay", 60))
    for q in range(4):
        for d in range(4):
            qf += singles(["v_lshlrev_b32 %s, 16, %s" % (vr(up + 8 * q + 2 * d), vr(AC[0] + 4 * q + d)),
                           "v_and_b32 %s, 0xffff0000, %s" % (vr(up + 8 * q + 2 * d + 1), vr(AC[0] + 4 * q + d))])
    qd = [Ex("at", d3 - 46)] + d_final(AC[1], 0) + [Ex("at", d3 - 30)]
    for k in range(4):
        qd += singles(["v_accvgpr_read_b32 %s, %s" % (vr(AC[1] + 8 * k + i), ar(224 + 8 * k + i)) for i in range(8)]) + d_final(AC[1], 1)[5 * k:5 * k + 5]
    qc = [Ex("at", da + 150)] + [X(*o) for o in code_touch("S_D3")]
    r = St.run(d3, [(qc, None), (qy, None), (ql2, da + 250), (ql, da + HDL), (qd, None), (qf, d3)],
               rd_limit=BIG, flush=False, name="DA", carry=True)
    qd = r[4]
    if St.stamp_fn:
        stamp(E, "D3 start")
    end = len(St.items)

    def padd(reg, k):
        return ["v_mfma_f32_16x16x16_bf16 %s, %s, %s, %s" % (vr(AC[0] + 8 * k + 4 * h, 4), vr(ID, 2), reg(2 * h), vr(AC[0] + 8 * k + 4 * h, 4)) for h in range(2)]
    q2 = qd + [dl] + d_final(AC[4], 2) + [Ex("delay", opt("PDELAY", 36)), Ex("wtag", "p2"), X(signal(20, 128)), X(signal(21, 128)), X(signal(22, 128)),
                                         Ex("delay", opt("PD2", 20)), X(*poll_issue(23, 128)), Ex("delay", opt("PD3", 34)), chk(23, 128, "3")]
    PR = [lambda k: ar(224 + 4 * k, 4), lambda k: ar(240 + 4 * k, 4), lambda k: vr(AC[1] + 4 * k, 4)]
    for j in range(3):
        for k in range(4):
            q2.append(X("buffer_load_dwordx4 %s, %s, %s, %s offen offset:%d sc1" % (PR[j](k), vr(vL16), sr(sWS, 4), ("s11", "s14", "s15")[j], 1024 * k)))
    St.run(end, [(q2, None)], name="D3")
    stamp(E, "D done")
    for j in range(3):
        for k in range(4):
            E.ops(padd(lambda o: (ar(224 + 16 * j + 4 * k + o, 2) if j < 2 else vr(AC[1] + 4 * k + o, 2)), k))
    for f in range(2):
        for u in range(2):
            q = 2 * f + u
            a = AC[0] + 8 * q
            for i in range(0, 8, 2):
                E.op("v_pk_fma_f32 %s, %s, %s, %s" % (vr(a + i, 2), vr(a + i, 2), vr(GB + 8 * u + i, 2), vr(up + 8 * q + i, 2)))
            E.ops(pack8(a))
            E.op("v_permlane16_swap_b32 %s, %s" % (vr(a), vr(a + 2)))
            E.op("v_permlane16_swap_b32 %s, %s" % (vr(a + 1), vr(a + 3)))
            E.op("buffer_store_dwordx4 %s, %s, %s, %s offen offset:%d" % (vr(a, 4), vr(t), sr(sOUT, 4), "s13" if f else "s12", 64 * u))
```

```python
import struct
from asmlib import Asm, Ins, TRANS


def f32hex(x):
    return "0x%08x" % struct.unpack("<I", struct.pack("<f", x))[0]


def vr(b, n=1):
    return "v%d" % b if n == 1 else "v[%d:%d]" % (b, b + n - 1)


def ar(b, n=1):
    return "a%d" % b if n == 1 else "a[%d:%d]" % (b, b + n - 1)


def sr(b, n=1):
    return "s%d" % b if n == 1 else "s[%d:%d]" % (b, b + n - 1)


class Em:
    def __init__(self):
        self.A = Asm()
        self.lq = []
        self.vq = []
        self.now = 0
        self.age = 7
        self.agev = 0
        self.tail = []
        self.uid = 0
        self.sm = False
        self.ret = False
        self.tags = set()
        self.junk = set()
        self.loaded = set()
        self.mode = None

    def label(self, n):
        self.A.label(n)

    def raw(self, t):
        self.A.raw(t)

    def nlines(self):
        return len(self.A.lines)

    @staticmethod
    def _need(q, regs):
        need = None
        for i, e in enumerate(q):
            if e[0] & regs:
                need = len(q) - 1 - i
        return need

    def pending(self, text):
        ins = Ins(text)
        regs = ins.src | ins.dst
        return self._need(self.lq, regs), self._need(self.vq, regs)

    def wait(self, lg=None, vm=None):
        if lg is not None and lg >= len(self.lq) and not (lg == 0 and self.sm):
            lg = None
        if lg == 0:
            self.sm = False
            self.ret = False
        if vm is not None and vm >= len(self.vq):
            vm = None
        if lg is None and vm is None:
            return
        parts = []
        if vm is not None:
            vm = min(vm, 63)
            parts.append("vmcnt(%d)" % vm)
            self.vq = self.vq[len(self.vq) - vm:] if vm else []
        if lg is not None:
            lg = min(lg, 15)
            parts.append("lgkmcnt(%d)" % lg)
            self.lq = self.lq[len(self.lq) - lg:] if lg else []
        self.A.op("s_waitcnt " + " ".join(parts))

    def force_wait(self, lg=False, vm=False):
        parts = []
        if vm:
            parts.append("vmcnt(0)")
            self.vq = []
        if lg:
            parts.append("lgkmcnt(0)")
            self.lq = []
            self.sm = False
            self.ret = False
        self.A.op("s_waitcnt " + " ".join(parts))

    def vm_count(self, tag):
        need = None
        for i, e in enumerate(self.vq):
            if e[1] == tag:
                need = len(self.vq) - 1 - i
        return need

    def wait_tag(self, tag):
        self.wait(vm=self.vm_count(tag))

    def op(self, text, tag=None, batch=False):
        ins = Ins(text)
        ins.dst = ins.dst - self.junk
        regs = ins.src | ins.dst
        if ins.kind == "mfma" and self.mode:
            xs = {r for r in (ins.srcA | ins.srcB) if r[0] == "a"}
            if self.mode == "need":
                assert xs <= self.loaded, "X fragment not loaded yet: " + text
            else:
                assert not (xs & self.loaded), "X fragment already overwritten: " + text
        if ins.kind == "vmem":
            self.loaded |= {r for r in ins.dst if r[0] == "a"}
        lg = self._need(self.lq, regs)
        vm = self._need(self.vq, regs)
        if lg is not None and batch:
            young = sum(1 for e in self.lq if self.now - e[2] < self.age)
            lg = min(lg, young)
        if vm is not None and self.agev:
            old = [i for i, e in enumerate(self.vq) if e[0] and self.now - e[2] >= self.agev]
            if old:
                vm = min(vm, len(self.vq) - 1 - old[-1])
        self.wait(lg, vm)
        self.A.op(text)
        if ins.kind == "ds":
            self.lq.append((set(ins.dst), tag, self.now))
        elif ins.kind == "vmem":
            self.vq.append((set(ins.dst), tag, self.now))
            self.tags.add(tag)
        elif ins.kind == "smem":
            self.ret = self.ret or bool(ins.dst)
            self.sm = True

    def ops(self, lst):
        for t in lst:
            self.op(t)

    def newlabel(self, base):
        self.uid += 1
        return "%s_%d" % (base, self.uid)


def cost(t):
    mn = t.split()[0]
    if mn.endswith(":"):
        return 0
    if mn in TRANS:
        return 2
    if mn.startswith(("buffer_", "global_")):
        return 2
    if mn.startswith("ds_write"):
        return 4
    if mn.startswith("v_mfma"):
        return 2
    return 1


class Ex:
    def __init__(self, kind, val=None, tag=None, m0=False, c=None, hol=False):
        self.kind, self.val, self.tag, self.m0 = kind, val, tag, m0
        self.hol = hol
        if kind == "ops":
            self.cost = sum(cost(t) for t in val) if c is None else c
            self.lds = any(t.startswith("ds_") for t in val)
            self.vmem = any(t.startswith(("buffer_", "global_")) for t in val)
            self.urgent = any("atomic" in t for t in val)
        else:
            self.cost = {"wtag": 1, "fn": c or 1}.get(kind, 0)
            self.lds = self.vmem = False
            self.urgent = True


def X(*ops, **kw):
    return Ex("ops", list(ops), **kw)


class Stage:
    def __init__(self, name):
        self.name = name
        self.dma = []
        self.items = []
        self.hold = False
        self.issued = False
        self.barred = False


class Stream:
    def __init__(self, E, stages, wf, nfr, low=8, high=None, dma_gap=5, dma_start=1):
        self.E = E
        self.stages = stages
        self.wf, self.nfr = wf, nfr
        self.low = low
        self.high = high or 2 * (nfr - 1)
        self.dma_gap, self.dma_start = dma_gap, dma_start
        self.items = []
        for si, st in enumerate(stages):
            for (mf, rd) in st.items:
                self.items.append((si, mf, rd))
        self.first_item = {}
        for i, it in enumerate(self.items):
            self.first_item.setdefault(it[0], i)
        self.cur = 0
        self.rd = 0
        self.dq = []
        self.m0_busy = False
        self.last_dma = -99
        self.nbar = 0
        self.stamp_fn = None
        self.pre_fn = None
        self.wst = None
        self.novm = False
        self.maxrr = 99
        self.rr = 0
        self.hard = 9
        self.cap = 0.56
        self.hol_len, self.hol_budget, self.hol_until, self.hol_left = 0, 11, -1, 0
        self.behind = False
        self.fast_gap = 4
        self.drain = 5
        self.prev_vm = False
        self.prev_reads = 1
        self.stat = []

    def queue_dma(self, si):
        if si >= len(self.stages):
            return
        st = self.stages[si]
        if st.issued or st.hold:
            return
        st.issued = True
        for (pre, loads) in st.dma:
            for j, l in enumerate(loads):
                self.dq.append(((pre if j == 0 else []) + [l], "W%d" % si, j == 0, j == len(loads) - 1))

    def issue_dma_now(self, si, groups=None):
        assert not self.m0_busy
        st = self.stages[si]
        if not hasattr(st, "left"):
            st.left = list(st.dma)
        n = len(st.left) if groups is None else groups
        for (pre, loads) in st.left[:n]:
            for t in pre:
                self.E.op(t)
            for l in loads:
                self.E.op(l, tag="W%d" % si)
        st.left = st.left[n:]
        if not st.left:
            st.issued = True

    def flush_dma(self):
        for (ops, tag, o, c) in self.dq:
            for t in ops:
                self.E.op(t, tag=tag)
        self.dq = []
        self.m0_busy = False

    def _rdtext(self, n):
        it = self.items[n >> 1]
        reg = self.wf + 4 * ((n >> 1) % self.nfr) + 2 * (n & 1)
        return it[2][n & 1].replace("%W", vr(reg, 2))

    def barrier(self, si):
        E = self.E
        st = self.stages[si]
        assert st.issued and not any(e[1] == "W%d" % si for e in self.dq), "DMA of stage %s not issued" % st.name
        if self.pre_fn:
            self.pre_fn(si)
        E.wait(lg=0, vm=None if self.novm else E.vm_count("W%d" % si))
        if self.stamp_fn:
            self.stamp_fn(si)
        E.A.op("s_barrier")
        st.barred = True
        self.nbar += 1
        self.queue_dma(si + 3)
        self.last_dma = min(self.last_dma, E.now - self.dma_gap + self.dma_start)

    def can_read(self, limit, inpair):
        n = self.rd
        if n >= 2 * limit:
            return False
        done = self.cur if not inpair else self.cur
        return (n >> 1) - self.nfr < done

    def preread(self, cnt):
        for _ in range(cnt):
            si = self.items[self.rd >> 1][0]
            if not self.stages[si].barred:
                self.barrier(si)
            assert (self.rd >> 1) - self.nfr < self.cur
            self.E.op(self._rdtext(self.rd))
            self.rd += 1

    def run(self, end_item, queues, rd_limit=None, open_next=True, flush=True, name="", carry=False):
        E = self.E
        rd_limit = end_item if rd_limit is None else min(rd_limit, len(self.items))
        qs = [dict(q=list(q), dl=dl, until=-1, bar=None) for q, dl in queues]
        E.label("S_" + name.replace("+", "_"))
        l0 = E.nlines()
        nm = 0
        over = 0
        next_stage = self.items[end_item][0] if end_item < len(self.items) else None

        def head(s, draining):
            while s["q"]:
                e = s["q"][0]
                if e.kind == "bar":
                    if s["bar"] is None:
                        s["bar"] = self.nbar
                    if self.nbar > s["bar"]:
                        s["bar"] = None
                        s["q"].pop(0)
                        continue
                    return None
                if e.kind == "need":
                    assert e.val in E.tags, "tag %s has not been issued" % e.val
                    s["q"].pop(0)
                    continue
                if e.kind == "delay":
                    s["until"] = E.now + e.val
                    s["q"].pop(0)
                    continue
                if e.kind == "at":
                    if self.cur >= e.val:
                        s["q"].pop(0)
                        continue
                    return None
                if E.now < s["until"]:
                    return None
                if e.m0 and self.m0_busy:
                    return None
                if e.hol and self.hol_len and self.dq and E.now >= self.hol_until:
                    return None
                if e.lds and draining:
                    return None
                return e
            return None

        def emit_ex(e):
            if e.kind == "ops":
                for t in e.val:
                    if t.endswith(":"):
                        E.label(t[:-1])
                    else:
                        E.op(t, tag=e.tag)
            elif e.kind == "wtag":
                if self.wst:
                    self.wst("[" + e.val)
                E.wait_tag(e.val)
                if self.wst:
                    self.wst(e.val + "]")
            elif e.kind == "fn":
                if self.wst:
                    self.wst("[chk")
                e.val(E)
                if self.wst:
                    self.wst("chk]")

        while self.cur < end_item:
            si, mf, rdt = self.items[self.cur]
            assert self.rd >= 2 * self.cur + 2, "fragment not read in time"
            wreg = vr(self.wf + 4 * (self.cur % self.nfr), 4)
            for j, m in enumerate(mf):
                E.op(m.replace("%W", wreg), batch=True)
                nm += 1
                last = (j == len(mf) - 1)
                if last:
                    self.cur += 1
                E.now += 1
                budget = 2
                if self.cur < end_item:
                    nx = self.items[self.cur][1][0 if last else j + 1].replace("%W", vr(self.wf + 4 * (self.cur % self.nfr), 4))
                    if self.rd >= 2 * self.cur + 2 and any(p is not None for p in E.pending(nx)):
                        budget -= 1
                press = 0
                for k, s in enumerate(qs):
                    if s["dl"] is None or not s["q"]:
                        continue
                    gaps = 2 * (s["dl"] - self.cur)
                    need = 0
                    for s2 in qs[:k + 1]:
                        for e in s2["q"]:
                            if e.kind == "at" and e.val >= s["dl"]:
                                break
                            need += e.cost
                    first = next((e for e in s["q"] if e.kind not in ("delay",)), None)
                    if first is not None and first.kind == "at" and first.val > self.cur:
                        continue
                    need += 2 * max(0, len(self.dq) - 8)
                    if need > self.cap * gaps:
                        press = max(press, 1)
                    if need > (self.cap + 1) * gaps:
                        press = 2
                budget += press
                rd0 = self.rd
                vm0 = self.prev_vm
                self.prev_vm = False
                full = budget

                def read():
                    E.op(self._rdtext(self.rd))
                    self.rd += 1

                def take(s, e):
                    n0 = E.nlines()
                    emit_ex(e)
                    s["q"].pop(0)
                    if e.vmem:
                        self.prev_vm = True
                    if e.hol and E.now >= self.hol_until:
                        self.hol_until = E.now + self.hol_len
                        self.hol_left = self.hol_budget
                    return max(e.cost, E.nlines() - n0)
                while True:
                    base = 2 * self.cur + (0 if last else 1)
                    lead = self.rd - base
                    want_bar = None
                    if self.rd < 2 * rd_limit:
                        rs = self.items[self.rd >> 1][0]
                        if not self.stages[rs].barred:
                            want_bar = rs
                    elif open_next and next_stage is not None and not self.stages[next_stage].barred \
                            and self.rd >= 2 * end_item and self.stages[next_stage].issued:
                        want_bar = next_stage
                    draining = want_bar is not None
                    heads = [(s, head(s, draining)) for s in qs]
                    heads = [(s, e) for s, e in heads if e is not None]
                    urg = [(s, e) for s, e in heads if e.urgent]
                    if urg and not draining:
                        budget -= take(*urg[0])
                        continue
                    if budget <= 0:
                        break
                    heads = [(s, e) for s, e in heads if not e.urgent]
                    mine = draining and any(d[1] == "W%d" % want_bar for d in self.dq)
                    if draining:
                        aged = all(E.now - e[2] >= self.drain for e in E.lq)
                        if (aged or lead <= 4) and not mine and budget == full:
                            self.barrier(want_bar)
                            budget -= 2
                            continue
                    rd_ok = (not draining) and self.can_read(rd_limit, not last)
                    nread = self.rd - rd0
                    if rd_ok and (lead < self.hard or (lead < self.low and self.prev_reads == 0)):
                        read()
                        budget -= 1
                        continue
                    gap = self.dma_gap if len(self.dq) <= 8 and not self.behind else self.fast_gap
                    if E.now < self.hol_until and self.hol_left <= 0 and not mine:
                        gap = 999
                        self.behind = True
                    if not self.dq:
                        self.behind = False
                    dma_due = self.dq and (E.now - self.last_dma >= gap or mine)
                    if self.dq and len(self.dq[0][0]) > 1 and (E.now - self.last_dma >= gap - 3 or mine) \
                            and (nread or not rd_ok or budget < full):
                        ops, tag, o, c = self.dq[0]
                        self.m0_busy = True
                        E.op(ops[0])
                        self.dq[0] = (ops[1:], tag, o, c)
                        budget -= 1
                        continue
                    if budget >= 2 and not ((vm0 or self.prev_vm) and not mine):
                        if dma_due and len(self.dq[0][0]) == 1:
                            ops, tag, o, c = self.dq.pop(0)
                            E.op(ops[0], tag=tag)
                            self.m0_busy = not c
                            self.last_dma = E.now
                            self.hol_left -= 1
                            self.prev_vm = True
                            budget -= 2
                            continue
                    big = [(s, e) for s, e in heads[:1] if e.cost >= 2 and not (e.vmem and (vm0 or self.prev_vm))]
                    if big and budget >= 2:
                        budget -= take(*big[0])
                        continue
                    if rd_ok and nread == 0 and lead < self.high:
                        read()
                        budget -= 1
                        continue
                    if rd_ok and lead < self.low and self.rr < self.maxrr:
                        read()
                        budget -= 1
                        continue
                    small = [(s, e) for s, e in heads if e.cost <= budget and not (e.vmem and (vm0 or self.prev_vm))]
                    if small:
                        budget -= take(*small[0])
                        continue
                    if rd_ok and lead < self.high and self.rr < self.maxrr:
                        read()
                        budget -= 1
                        continue
                    break
                self.prev_reads = self.rd - rd0
                self.rr = self.rr + 1 if self.rd - rd0 >= 2 else 0
                if budget < 0:
                    over -= budget
            for s in qs:
                if s["dl"] is not None and self.cur >= s["dl"] and s["q"]:
                    left = sum(e.cost for e in s["q"])
                    print("   [sched] %s: deadline flush of %d slots at item %d" % (name, left, self.cur))
                    self._flush(s, emit_ex)
        left = [sum(e.cost for e in s["q"]) for s in qs]
        print("   [sched] %-10s mfma %d lines %d left %s dq %d" % (name, nm, E.nlines() - l0, left, len(self.dq)))
        if flush:
            for s in qs:
                head(s, True)
            self.flush_dma()
            if open_next and next_stage is not None and not self.stages[next_stage].barred and self.stages[next_stage].issued:
                self.barrier(next_stage)
                self.flush_dma()
            for s in qs:
                self._flush(s, emit_ex)
            return None
        if not carry:
            assert all(e.kind in ("delay", "at") for s in qs for e in s["q"]), "extras left over"
        return [s["q"] for s in qs]

    def _flush(self, s, emit_ex):
        for e in s["q"]:
            if e.kind == "bar":
                assert s["bar"] is not None and self.nbar > s["bar"], "flush across a pending barrier marker"
                s["bar"] = None
            elif e.kind in ("delay", "at"):
                pass
            else:
                if e.m0 and self.m0_busy:
                    self.flush_dma()
                emit_ex(e)
        s["q"] = []
```

```python
import os
import sys

sys.path.insert(0, os.path.dirname(os.path.abspath(__file__)))
from m3lib import *

NAME = "adaLN_cond__sliding_local_dilated__glu_gated_swiglu__prompt"
L = NAME + "_kernel"
S, D, F = 2048, 1024, 3584
KB, MB = 1 << 10, 1 << 20
DBG = os.environ.get("DBG", "").split(",")
STOP = int(os.environ.get("STOP", "99"))


def opt(name, default):
    return type(default)(os.environ.get(name, default))


def NT(k):
    return " nt" if k in opt("NT", "GMX") else ""


WS_CNT = 0
WS_P1 = 512 * KB
WS_P2 = 576 * KB
WS_ST = 704 * KB
WS_HALO = 1 * MB
WS_O = 2 * MB
WS_X1 = 6 * MB
WS_HH = 10 * MB
WS_PART = 25 * MB
WS_STAMP = 64 * MB
WS_SIZE = 72 * MB
OOB = 0x7ffffff0
LIMIT = opt("LIMIT", 1 << 18)

MISC = 131072
TD = MISC
TE = MISC + 8704
CS = MISC + 12800
GT = MISC + 13312
LCNT = MISC + 13824
XCH = MISC + 16384

sX, sQKV, sWO, sW1, sW3, sW2, sWH, sWM, sWS, sOUT, sT = 28, 32, 36, 40, 44, 48, 52, 56, 60, 64, 68
s_w, s_rb, s_c, s_cw, s_LW, s_d, s_t0, s_t1, s_t2, s_cnt = 72, 73, 74, 75, 76, 77, 78, 79, 80, 81
s_bq, s_bo, s_bf, s_bh, s_bm = 82, 83, 84, 85, 86
s_P = 87
s_OW, s_HW, s_oT, s_x = 88, 89, 90, 91
s_hm0, s_one = 68, 69
s_hsv = 85
s_oHS, s_oHP, s_eH, s_oH0 = 97, 98, 99, 100
s_i = 101
JUNKCNT = WS_CNT + 320 * KB
s_st = 92
s_oob = 96
s_pc = 0
s_pf = 3
s_bd4 = 97
s_hb, s_hh, s_hx, s_pt = 4, 5, 6, 7
s_bf2, s_hx2 = 25, 26
s_msk = 4

T0 = 2
aW = [[10, 11, 12, 13], [14, 15, 16, 17]]
aH = [[18, 19], [20, 21]]
vDq, vD2, vDf, vDh, vDm = 22, 26, 30, 34, 38
vDd, vDe = 38, 42
vL16 = 46
vST0, vST1 = 47, 48
vTF, vTH, vSP, vONE = 49, 50, 51, 52
vA0, vA1, vA2, vA3 = 53, 54, 55, 56
vJUNK = 57
vPF, vCP = 8, 9
RC = 58
RT = 60
CM = 68
TX = 76
WF, NFR = 80, 12
AC = [128, 160, 192, None, 224]
U = 224


def XR(ks, f, n=4, o=0):
    return ar(8 * ks + 4 * f + o, n)


def srd(E, d, lo, size):
    E.op("s_mov_b32 s%d, s%d" % (d, lo))
    E.op("s_mov_b32 s%d, s%d" % (d + 1, lo + 1))
    E.op("s_mov_b32 s%d, 0x%x" % (d + 2, size))
    E.op("s_mov_b32 s%d, 0x20000" % (d + 3))


NSTAMP = [0]
STAMP_NAMES = []


STAMP_ON = [opt("SFROM", "") == ""]


def stamp(E, name):
    if "stamp" not in DBG:
        return
    if name == opt("SFROM", ""):
        STAMP_ON[0] = True
    if (not STAMP_ON[0] and name != "entry") or (NSTAMP[0] >= 63 and name != "end"):
        return
    i = NSTAMP[0]
    NSTAMP[0] += 1
    STAMP_NAMES.append(name)
    assert i < 64
    E.wait(lg=0)
    E.A.op("s_memtime s[%d:%d]" % (s_st, s_st + 1))
    E.A.op("s_memrealtime s[%d:%d]" % (s_st + 2, s_st + 3))
    E.A.op("s_waitcnt lgkmcnt(0)")
    E.op("v_writelane_b32 %s, s%d, %d" % (vr(vST0), s_st, i))
    E.op("v_writelane_b32 %s, s%d, %d" % (vr(vST1), s_st + 2, i))


def rnd_hi(E, v, t):
    E.op("v_cvt_pk_bf16_f32 %s, %s, %s" % (vr(t), vr(v), vr(v)))
    E.op("v_lshlrev_b32 %s, 16, %s" % (vr(v), vr(t)))


def vsignal(vaddr):
    return "buffer_atomic_add %s, %s, %s, 0 offen sc1" % (vr(vONE), vr(vaddr), sr(sWS, 4))


def _imm(imm):
    return " offset:%d" % imm if imm else ""


def signal(soff, imm=0, data=s_one):
    return "s_atomic_add %s, %s, %s%s" % (sr(data), sr(sWS, 2), sr(soff), _imm(imm))


def poll_issue(soff, imm=0, sp=s_P, val=0):
    return ["s_mov_b32 %s, %d" % (sr(sp), val), "s_atomic_add %s, %s, %s%s glc" % (sr(sp), sr(sWS, 2), sr(soff), _imm(imm))]


def poll_check(E, soff, imm, expect, first=None):
    lab = E.newlabel("pl")
    if E.ret:
        E.wait(lg=0)
    E.op("s_cmp_lt_u32 %s, %s" % (sr(s_P), expect if first is None else first))
    E.op("s_cbranch_scc1 %s_slow" % lab)
    E.label(lab + "_ok")
    E.tail += [lab + "_slow:", "s_mov_b32 %s, 0" % sr(s_cnt), lab + "_loop:"] + poll_issue(soff, imm) + [
        "s_add_u32 %s, %s, 1" % (sr(s_cnt), sr(s_cnt)),
        "s_waitcnt lgkmcnt(0)",
        "s_cmp_ge_u32 %s, %s" % (sr(s_P), expect),
        "s_cbranch_scc1 %s_ok" % lab,
        "s_cmp_lt_u32 %s, 0x%x" % (sr(s_cnt), LIMIT),
        "s_cbranch_scc1 %s_loop" % lab,
        "s_branch %s_ok" % lab]


def poll8_issue(E, imm, lab, wave):
    E.op("s_cmp_lg_u32 %s, %d" % (sr(s_w), wave))
    E.op("s_cbranch_scc1 %s_noi" % lab)
    for q in range(8):
        E.ops(poll_issue(s_oH0, imm + 2048 * q, 4 + q))
    E.label(lab + "_noi")


def poll8_check(E, imm, lab, wave):
    A = E.A
    E.wait(lg=0)
    E.op("s_cmp_lg_u32 %s, %d" % (sr(s_w), wave))
    E.op("s_cbranch_scc1 %s_done" % lab)
    E.op("s_mov_b32 %s, 0" % sr(s_cnt))
    E.label(lab + "_loop")
    for q in range(1, 8):
        E.op("s_min_u32 s4, s4, s%d" % (4 + q))
    E.op("s_cmp_ge_u32 s4, 32")
    E.op("s_cbranch_scc1 %s_done" % lab)
    for q in range(8):
        for t in poll_issue(s_oH0, imm + 2048 * q, 4 + q):
            A.op(t)
    E.op("s_add_u32 %s, %s, 1" % (sr(s_cnt), sr(s_cnt)))
    E.op("s_cmp_lt_u32 %s, 0x%x" % (sr(s_cnt), LIMIT))
    A.op("s_waitcnt lgkmcnt(0)")
    E.op("s_cbranch_scc1 %s_loop" % lab)
    E.label(lab + "_done")


def blk_off(dst, c_sgpr, idx):
    return ["s_lshl_b32 %s, %s, 4" % (sr(dst), sr(s_rb)),
            "s_add_u32 %s, %s, %s" % (sr(dst), sr(dst), sr(c_sgpr)),
            "s_lshl_b32 %s, %s, 10" % (sr(dst), sr(dst)),
            "s_add_u32 %s, %s, %d" % (sr(dst), sr(dst), WS_CNT + 256 * 128 + idx * 128)]


def xgroup_reduce_n(E, vs, ts, opn):
    for v, t in zip(vs, ts):
        E.op("v_mov_b32 %s, %s" % (vr(t), vr(v)))
    for v, t in zip(vs, ts):
        E.op("v_permlane32_swap_b32 %s, %s" % (vr(v), vr(t)))
    for v, t in zip(vs, ts):
        E.op("%s %s, %s, %s" % (opn, vr(v), vr(v), vr(t)))
    for v, t in zip(vs, ts):
        E.op("v_mov_b32 %s, %s" % (vr(t), vr(v)))
    for v, t in zip(vs, ts):
        E.op("v_permlane16_swap_b32 %s, %s" % (vr(v), vr(t)))
    for v, t in zip(vs, ts):
        E.op("%s %s, %s, %s" % (opn, vr(v), vr(v), vr(t)))


STAGES = []


def add_stage(name, srd_, groups, items_fn):
    st = Stage(name)
    slot = len(STAGES) % 4
    for gi, (sbase, const, n, vv) in enumerate(groups):
        if "samew" in DBG and len(STAGES) > 4:
            srd_, sbase, const, vv = sQKV, s_bq, 2048 + 128 * 6144 * (2 * slot + gi), vDq
        pre = ["s_add_u32 m0, %s, %d" % (sr(s_LW), slot * 32768 + gi * 4096),
               "s_add_u32 %s, %s, 0x%x" % (sr(s_d), sr(sbase), const)]
        loads = ["buffer_load_dwordx4 %s, %s, %s offen offset:%d%s lds" % (vr(vv + i), sr(srd_, 4), sr(s_d), 1024 * i, NT("M") if name == "M" else "")
                 for i in range(n)]
        if "nodma" in DBG and len(STAGES) > 3:
            continue
        st.dma.append((pre, loads))
    st.items = items_fn(slot)
    STAGES.append(st)
    return st


def rd_std(slot, ksl, t):
    return ["ds_read_b64_tr_b16 %%W, %s offset:%d" % (vr(aW[slot >> 1][t]), (slot & 1) * 32768 + h * 16384 + ksl * 1024)
            for h in range(2)]


def rd_h(slot, ksl, t):
    return ["ds_read_b64_tr_b16 %%W, %s offset:%d" % (vr(aH[slot >> 1][t & 1]), (slot & 1) * 32768 + (t >> 1) * 16384 + h * 8192 + ksl * 1024)
            for h in range(2)]


def acc_reg(s, f, t):
    return AC[s] + 16 * f + 4 * t


def acc_txt(aset, f, t):
    if aset == 3:
        return ar(224 + 16 * f + 4 * t, 4)
    return vr(acc_reg(aset, f, t), 4)


def gstages(name, srd_, groups, swap=False, himg=False, hook=None, q0=0):
    first = len(STAGES)
    for q in range(0, len(groups), 2):
        gs = groups[q:q + 2]

        def items(slot, gs=gs):
            out = []
            for gi, (sb, const, vv, aset, x0) in enumerate(gs):
                for i in range(4):
                    ks = x0 + i
                    for t in range(4):
                        mf = []
                        for f in range(2):
                            a = acc_txt(aset, f, t)
                            ops = (XR(ks, f), "%W") if swap else ("%W", XR(ks, f))
                            mf.append("v_mfma_f32_16x16x32_bf16 %s, %s, %s, %s" % (a, ops[0], ops[1], "0" if ks == 0 else a))
                        out.append((mf, (rd_h if himg else rd_std)(slot, 4 * gi + i, t)))
            return out
        if hook and q // 2 == hook[0]:
            hook[1]()
        add_stage("%s.%d" % (name, q0 + q // 2), srd_, [(g[0], g[1], 4, g[2]) for g in gs], items)
    return first


def sweep(name, srd_, vD, sbase, pitch, col, aset, **kw):
    return gstages(name, srd_, [(sbase, 128 * g * pitch + col, vD, aset, 4 * g) for g in range(8)], **kw)


def row_consts(E, vsum, vsq):
    t = T0
    E.op("v_and_b32 %s, 3, v1" % vr(t))
    for r in range(1, 4):
        E.op("v_cmp_eq_u32 vcc, %d, %s" % (r, vr(t)))
        for f in range(2):
            E.op("v_cndmask_b32 %s, %s, %s, vcc" % (vr(vsq[f]), vr(vsq[f]), vr(vsq[f] + r)))
    E.op("v_and_b32 %s, 15, v1" % vr(t))
    E.op("v_lshrrev_b32 %s, 2, %s" % (vr(t + 1), vr(t)))
    E.op("v_lshl_add_u32 %s, %s, 4, %s" % (vr(t), vr(t + 1), vr(t)))
    E.op("v_lshlrev_b32 %s, 2, %s" % (vr(t), vr(t)))
    for f in range(2):
        E.op("ds_bpermute_b32 %s, %s, %s" % (vr(vsq[f] + 1), vr(t), vr(vsq[f])))
    for f in range(2):
        E.op("v_mul_f32 %s, %s, %s" % (vr(vsum[f]), f32hex(1.0 / 1024), vr(vsum[f])))
    for f in range(2):
        E.op("v_mul_f32 %s, %s, %s" % (vr(vsum[f] + 1), vr(vsum[f]), vr(vsum[f])))
    for f in range(2):
        E.op("v_mul_f32 %s, %s, %s" % (vr(vsq[f] + 1), f32hex(1.0 / 1024), vr(vsq[f] + 1)))
    finish_consts(E, [vsum[f] for f in range(2)], [vsq[f] + 1 for f in range(2)], [vsum[f] + 1 for f in range(2)],
                  [vsum[f] + 2 for f in range(2)])


def finish_consts(E, mean, ex2, msq, tmp, cm=True):
    for f in range(2):
        E.op("v_sub_f32 %s, %s, %s" % (vr(ex2[f]), vr(ex2[f]), vr(msq[f])))
    for f in range(2):
        E.op("v_max_f32 %s, 0, %s" % (vr(ex2[f]), vr(ex2[f])))
    for f in range(2):
        rnd_hi(E, ex2[f], tmp[f])
    for f in range(2):
        E.op("v_add_f32 %s, %s, %s" % (vr(ex2[f]), f32hex(1e-5), vr(ex2[f])))
    for f in range(2):
        rnd_hi(E, ex2[f], tmp[f])
    for f in range(2):
        E.op("v_sqrt_f32 %s, %s" % (vr(ex2[f]), vr(ex2[f])))
    for f in range(2):
        E.op("v_sub_f32 %s, 0, %s" % (vr(mean[f]), vr(mean[f])))
    if cm:
        E.op("v_cmp_gt_u32 vcc, 16, v1")
    for f in range(2):
        E.op("v_cvt_pk_bf16_f32 %s, %s, %s" % (vr(tmp[f]), vr(ex2[f]), vr(mean[f])))
    for f in range(2):
        E.op("v_lshlrev_b32 %s, 16, %s" % (vr(TX + f), vr(tmp[f])))
    for f in range(2 if cm else 0):
        E.op("v_cndmask_b32 %s, 0, %s, vcc" % (vr(CM + 4 * f), vr(tmp[f])))
        E.op("v_mov_b32 %s, 0" % vr(CM + 4 * f + 1))
        E.op("v_mov_b32 %s, 0" % vr(CM + 4 * f + 2))
        E.op("v_mov_b32 %s, %s" % (vr(CM + 4 * f + 3), vr(CM + 4 * f)))
    for f in range(2):
        E.op("v_rcp_f32 %s, %s" % (vr(RC + f), vr(TX + f)))


def table_loads(E, base, kstride, off_s, off_g, R):
    E.op("v_lshlrev_b32 %s, 4, v0" % vr(T0))
    for which, off in enumerate((off_s, off_g)):
        for k in range(4):
            E.op("s_mov_b32 %s, 0x%x" % (sr(s_t0), base + k * kstride + off))
            E.op("buffer_load_dwordx4 %s, %s, %s, %s offen sc1" % (vr(R + 16 * which + 4 * k, 4), vr(T0), sr(sWS, 4), sr(s_t0)))


def table_build(E, R, nat):
    t = T0
    E.op("v_lshrrev_b32 %s, 3, v0" % vr(t))
    if nat:
        E.op("v_bfe_u32 %s, v0, 1, 2" % vr(t + 1))
        E.op("v_and_b32 %s, 1, v0" % vr(t + 2))
    else:
        E.op("v_and_b32 %s, 3, v0" % vr(t + 1))
        E.op("v_bfe_u32 %s, v0, 2, 1" % vr(t + 2))
    E.op("v_mul_u32_u24 %s, 272, %s" % (vr(t + 3), vr(t)))
    E.op("v_lshl_add_u32 %s, %s, 6, %s" % (vr(t + 3), vr(t + 1), vr(t + 3)))
    if nat:
        E.op("v_lshl_add_u32 %s, %s, 3, %s" % (vr(t + 3), vr(t + 2), vr(t + 3)))
        E.op("v_add_u32 %s, %d, %s" % (vr(t + 3), TD, vr(t + 3)))
        E.op("v_lshlrev_b32 %s, 7, %s" % (vr(t + 4), vr(t)))
        E.op("v_lshl_add_u32 %s, %s, 5, %s" % (vr(t + 4), vr(t + 1), vr(t + 4)))
        E.op("v_lshl_add_u32 %s, %s, 2, %s" % (vr(t + 4), vr(t + 2), vr(t + 4)))
        E.op("v_add_u32 %s, %d, %s" % (vr(t + 4), TE, vr(t + 4)))
    else:
        E.op("v_add_u32 %s, %d, %s" % (vr(t + 3), TD, vr(t + 3)))
        E.op("v_mul_u32_u24 %s, %d, %s" % (vr(t + 4), XCH - TD + 8, vr(t + 2)))
        E.op("v_add_u32 %s, %s, %s" % (vr(t + 4), vr(t + 3), vr(t + 4)))
        E.op("v_xor_b32 %s, 8, %s" % (vr(t + 3), vr(t + 4)))
    P = R + 32
    for z in (1, 3, 4, 6):
        E.op("v_mov_b32 %s, 0" % vr(P + z))
    for b in (R, R + 16):
        for x in (0, 2):
            E.op("v_pk_add_f32 %s, %s, %s" % (vr(b + x, 2), vr(b + x, 2), vr(b + 4 + x, 2)))
            E.op("v_pk_add_f32 %s, %s, %s" % (vr(b + 8 + x, 2), vr(b + 8 + x, 2), vr(b + 12 + x, 2)))
        for x in (0, 2):
            E.op("v_pk_add_f32 %s, %s, %s" % (vr(b + x, 2), vr(b + x, 2), vr(b + 8 + x, 2)))
    G = R + 16
    for x in (0, 2):
        E.op("v_cvt_pk_bf16_f32 %s, %s, %s" % (vr(G + 4 + x), vr(G + x), vr(G + x + 1)))
    for x in (0, 2):
        E.op("v_lshlrev_b32 %s, 16, %s" % (vr(G + x), vr(G + 4 + x)))
        E.op("v_and_b32 %s, 0xffff0000, %s" % (vr(G + x + 1), vr(G + 4 + x)))
    for r in range(4):
        E.op("v_add_f32 %s, 1.0, %s" % (vr(G + r), vr(G + r)))
    for r in range(4):
        E.op("v_cvt_pk_bf16_f32 %s, %s, %s" % (vr(P + 8 + r), vr(R + r), vr(G + r)))
    E.op("v_lshrrev_b32 %s, 16, %s" % (vr(P + 0), vr(P + 8)))
    E.op("v_and_b32 %s, 0xffff0000, %s" % (vr(P + 2), vr(P + 9)))
    E.op("v_lshrrev_b32 %s, 16, %s" % (vr(P + 5), vr(P + 10)))
    E.op("v_and_b32 %s, 0xffff0000, %s" % (vr(P + 7), vr(P + 11)))
    for r in range(4):
        E.op("ds_write_b64 %s, %s offset:%d" % (vr(t + 3), vr(P + 2 * r, 2), 16 * r))
    if nat:
        E.op("ds_write2_b32 %s, %s, %s offset0:0 offset1:2" % (vr(t + 4), vr(P + 8), vr(P + 9)))
        E.op("ds_write2_b32 %s, %s, %s offset0:4 offset1:6" % (vr(t + 4), vr(P + 10), vr(P + 11)))
    else:
        for r in range(4):
            E.op("ds_write2_b32 %s, %s, %s offset0:%d offset1:%d" % (vr(t + 4), vr(P + 8 + r), vr(P + 1), 4 * r, 4 * r + 1))


def modulate(E, between=None):
    t = T0
    E.op("v_and_b32 %s, 15, v1" % vr(t))
    E.op("v_lshrrev_b32 %s, 2, %s" % (vr(t + 1), vr(t)))
    E.op("v_lshrrev_b32 %s, 4, v1" % vr(t + 2))
    E.op("v_cmp_eq_u32 vcc, %s, %s" % (vr(t + 1), vr(t + 2)))
    E.op("v_lshlrev_b32 %s, 4, %s" % (vr(t + 1), vr(t)))
    E.op("v_mov_b32 %s, 256" % vr(t + 2))
    E.op("v_cndmask_b32 %s, %s, %s, vcc" % (vr(t + 1), vr(t + 2), vr(t + 1)))
    E.op("v_add_u32 %s, %d, %s" % (vr(vA0), TD, vr(t + 1)))
    E.op("v_lshlrev_b32 %s, 3, %s" % (vr(t), vr(t)))
    E.op("v_add_u32 %s, %d, %s" % (vr(vA1), TE, vr(t)))
    NA = 4
    Areg = [AC[0] + 8 * i for i in range(NA)]
    Dreg = [AC[1] + 8 * i for i in range(4)]

    def rd(ks):
        return ["ds_read_b128 %s, %s offset:%d" % (vr(Areg[ks % NA], 4), vr(vA0), 272 * ks),
                "ds_read_b64 %s, %s offset:%d" % (vr(Areg[ks % NA] + 4, 2), vr(vA1), 128 * ks)]

    def post(n):
        d = Dreg[n % 4]
        x = 4 * n
        return ["v_cvt_pk_bf16_f32 %s, %s, %s" % (vr(d), vr(d), vr(d + 1)),
                "v_cvt_pk_bf16_f32 %s, %s, %s" % (vr(d + 1), vr(d + 2), vr(d + 3)),
                "v_cvt_pk_bf16_f32 %s, %s, %s" % (vr(d + 4), vr(d + 4), vr(d + 5)),
                "v_cvt_pk_bf16_f32 %s, %s, %s" % (vr(d + 5), vr(d + 6), vr(d + 7)),
                "v_accvgpr_write_b32 %s, %s" % (ar(x), vr(d)),
                "v_accvgpr_write_b32 %s, %s" % (ar(x + 1), vr(d + 1)),
                "v_accvgpr_write_b32 %s, %s" % (ar(x + 2), vr(d + 4)),
                "v_accvgpr_write_b32 %s, %s" % (ar(x + 3), vr(d + 5))]
    for ks in range(3):
        E.ops(rd(ks))
    for n in range(66):
        pv = post(n - 2) if n >= 2 else []
        if n < 64:
            ks, f = n >> 1, n & 1
            a, d = Areg[ks % NA], Dreg[n % 4]
            ms = ["v_mfma_f32_16x16x16_bf16 %s, %s, %s, 0" % (vr(d, 4), vr(a + 4, 2), vr(CM + 4 * f, 2)),
                  "v_mfma_f32_16x16x16_bf16 %s, %s, %s, 0" % (vr(d + 4, 4), vr(a + 4, 2), vr(CM + 4 * f + 2, 2)),
                  "v_mfma_f32_16x16x16_bf16 %s, %s, %s, %s" % (vr(d, 4), vr(a, 2), XR(ks, f, 2), vr(d, 4)),
                  "v_mfma_f32_16x16x16_bf16 %s, %s, %s, %s" % (vr(d + 4, 4), vr(a + 2, 2), XR(ks, f, 2, 2), vr(d + 4, 4))]
            for j in range(4):
                E.op(ms[j])
                E.ops(pv[2 * j:2 * j + 2])
                if j == 1 and ks + 3 < 32:
                    E.op(rd(ks + 3)[f])
            if between:
                between(n)
        else:
            E.ops(pv)


RAW = [80, 130]
M2A = 180
M2D = [204, 212, 240, 248]


def raw_reg(n):
    return RAW[n & 1] + 2 + 6 * ((n >> 1) % 8)


def raw_load(base, n):
    ops = []
    if n % 4 == 0:
        ops.append("s_add_u32 %s, %s, 0x%x" % (sr(s_x), sr(s_OW), base + 4096 * (n // 4)))
    ops.append("buffer_load_dwordx4 %s, %s, %s, %s offen offset:%d sc1" % (vr(raw_reg(n), 4), vr(vL16), sr(sWS, 4), sr(s_x), 1024 * (n % 4)))
    return ops


def mod2_prepare(E):
    t = T0
    E.op("v_and_b32 %s, 15, v1" % vr(t))
    E.op("v_lshrrev_b32 %s, 2, %s" % (vr(t + 1), vr(t)))
    E.op("v_lshrrev_b32 %s, 4, v1" % vr(t + 2))
    E.op("v_cmp_eq_u32 vcc, %s, %s" % (vr(t + 1), vr(t + 2)))
    E.op("v_lshlrev_b32 %s, 4, %s" % (vr(t + 1), vr(t)))
    E.op("v_mov_b32 %s, %d" % (vr(t + 2), TD + 256))
    E.op("v_add_u32 %s, %d, %s" % (vr(t + 3), TD, vr(t + 1)))
    E.op("v_add_u32 %s, %d, %s" % (vr(t + 4), XCH, vr(t + 1)))
    E.op("v_cndmask_b32 %s, %s, %s, vcc" % (vr(vA0), vr(t + 2), vr(t + 3)))
    E.op("v_cndmask_b32 %s, %s, %s, vcc" % (vr(vA1), vr(t + 2), vr(t + 4)))
    for f in range(2):
        for j in range(9):
            E.op("v_mov_b32 %s, 0" % vr(RAW[f] + 6 * j + 1))
    for ks in range(2):
        E.ops(mod2_rd(ks))


def mod2_rd(ks):
    a = M2A + 8 * (ks % 3)
    return ["ds_read_b128 %s, %s offset:%d" % (vr(a, 4), vr(vA0), 272 * ks),
            "ds_read_b128 %s, %s offset:%d" % (vr(a + 4, 4), vr(vA1), 272 * ks)]


def modulate2(E, base, c0, between=None):
    for j in range(9):
        for f in range(2):
            E.op("v_mov_b32 %s, %s" % (vr(RAW[f] + 6 * j), vr(c0[f])))

    def post(n):
        d = M2D[n % 4]
        x = 4 * n
        return ["v_cvt_pk_bf16_f32 %s, %s, %s" % (vr(d), vr(d), vr(d + 1)),
                "v_cvt_pk_bf16_f32 %s, %s, %s" % (vr(d + 1), vr(d + 2), vr(d + 3)),
                "v_cvt_pk_bf16_f32 %s, %s, %s" % (vr(d + 4), vr(d + 4), vr(d + 5)),
                "v_cvt_pk_bf16_f32 %s, %s, %s" % (vr(d + 5), vr(d + 6), vr(d + 7)),
                "v_accvgpr_write_b32 %s, %s" % (ar(x), vr(d)),
                "v_accvgpr_write_b32 %s, %s" % (ar(x + 1), vr(d + 1)),
                "v_accvgpr_write_b32 %s, %s" % (ar(x + 2), vr(d + 4)),
                "v_accvgpr_write_b32 %s, %s" % (ar(x + 3), vr(d + 5))]
    for n in range(66):
        pv = post(n - 2) if n >= 2 else []
        if n < 64:
            ks, f = n >> 1, n & 1
            a, d, r = M2A + 8 * (ks % 3), M2D[n % 4], raw_reg(n)
            E.op("v_mfma_f32_16x16x32_bf16 %s, %s, %s, 0" % (vr(d, 4), vr(a, 4), vr(r - 2, 4)))
            E.ops(pv[:4])
            E.op("v_mfma_f32_16x16x32_bf16 %s, %s, %s, 0" % (vr(d + 4, 4), vr(a + 4, 4), vr(r + 2, 4)))
            if n + 16 < 64:
                E.ops(raw_load(base, n + 16))
            if ks + 2 < 32:
                E.op(mod2_rd(ks + 2)[f])
            E.ops(pv[4:])
            if between:
                between(n)
        else:
            E.ops(pv)


def load_x(E, base, first, last, nks_stride=None):
    out = []
    for n in range(first, last):
        ops = []
        if n % 4 == 0 or n == first:
            ops.append("s_add_u32 %s, %s, 0x%x" % (sr(s_x), sr(s_OW), base + 4096 * (n // 4)))
        ops.append("buffer_load_dwordx4 %s, %s, %s, %s offen offset:%d sc1" % (ar(4 * n, 4), vr(vL16), sr(sWS, 4), sr(s_x), 1024 * (n % 4)))
        out.append(ops)
    return out


def prologue(E):
    A = E.A
    A.raw(".globl %s" % L)
    A.raw(".p2align 8")
    A.raw(".type %s,@function" % L)
    A.label(L)
    if "t0" in DBG:
        A.op("s_memtime s[88:89]")
        A.op("s_memrealtime s[90:91]")
    A.op("s_cmp_ge_u32 s2, 256")
    A.op("s_cbranch_scc1 K_end")
    A.op("s_load_dwordx16 s[12:27], s[0:1], 32")
    A.op("s_load_dwordx4 s[4:7], s[0:1], 0")
    A.op("s_load_dwordx2 s[8:9], s[0:1], 16")
    if "stamp" in DBG:
        E.op("v_mov_b32 %s, 0" % vr(vST0))
        E.op("v_mov_b32 %s, 0" % vr(vST1))
    if "t0" in DBG:
        A.op("s_waitcnt lgkmcnt(0)")
        E.op("v_writelane_b32 %s, s88, 0" % vr(vST0))
        E.op("v_writelane_b32 %s, s90, 0" % vr(vST1))
        NSTAMP[0] = 1
        STAMP_NAMES.append("t0")
        stamp(E, "karg")
    E.op("v_lshrrev_b32 v2, 6, v0")
    E.op("v_and_b32 v1, 63, v0")
    E.op("v_readfirstlane_b32 %s, v2" % sr(s_w))
    mp = opt("MP", 1)
    E.op("s_and_b32 s3, s2, 7")
    E.op("s_lshr_b32 %s, s2, 3" % sr(s_t0))
    E.op("s_and_b32 %s, s3, %d" % (sr(s_c), (1 << mp) - 1))
    E.op("s_lshl_b32 %s, %s, %d" % (sr(s_c), sr(s_c), 4 - mp))
    E.op("s_and_b32 %s, %s, %d" % (sr(s_t1), sr(s_t0), (1 << (4 - mp)) - 1))
    E.op("s_add_u32 %s, %s, %s" % (sr(s_c), sr(s_c), sr(s_t1)))
    E.op("s_lshr_b32 %s, s3, %d" % (sr(s_rb), mp))
    E.op("s_lshl_b32 %s, %s, %d" % (sr(s_rb), sr(s_rb), 1 + mp))
    E.op("s_lshr_b32 %s, %s, %d" % (sr(s_t1), sr(s_t0), 4 - mp))
    E.op("s_add_u32 %s, %s, %s" % (sr(s_rb), sr(s_rb), sr(s_t1)))
    E.op("s_mov_b32 %s, 0x%x" % (sr(s_oob), OOB))
    E.op("v_lshlrev_b32 %s, 4, v1" % vr(vL16))
    E.op("v_mov_b32 %s, 1" % vr(vONE))
    E.op("s_lshl_b32 %s, %s, 13" % (sr(s_LW), sr(s_w)))
    E.op("s_mov_b32 %s, 1" % sr(s_one))
    t = T0
    E.op("v_mov_b32 %s, 0" % vr(t + 1))
    E.op("s_lshl_b32 %s, %s, 2" % (sr(s_t1), sr(s_rb)))
    E.op("s_add_u32 %s, %s, %s" % (sr(s_t1), sr(s_t1), sr(s_w)))
    E.op("s_lshl_b32 %s, %s, 16" % (sr(s_OW), sr(s_t1)))
    E.op("s_mul_i32 %s, %s, %d" % (sr(s_HW), sr(s_t1), 112 * 2048))
    E.op("s_lshl_b32 %s, s2, 2" % sr(s_i))
    E.op("s_add_u32 %s, %s, %s" % (sr(s_i), sr(s_i), sr(s_w)))
    E.op("v_lshlrev_b32 %s, 7, v1" % vr(t + 2))
    nsh = 4 - mp
    E.op("s_and_b32 %s, %s, %d" % (sr(s_t0), sr(s_c), (1 << nsh) - 1))
    E.op("s_lshl_b32 %s, %s, %d" % (sr(s_t0), sr(s_t0), 18 - nsh))
    E.op("s_lshl_b32 %s, %s, 18" % (sr(s_x), sr(s_rb)))
    E.op("s_add_u32 %s, %s, %s" % (sr(s_t0), sr(s_t0), sr(s_x)))
    E.op("s_add_u32 %s, %s, %s" % (sr(s_t2), sr(s_t0), sr(s_LW)))
    E.op("s_lshr_b32 %s, s2, 3" % sr(s_t0))
    E.op("s_lshl_b32 %s, %s, 2" % (sr(s_t0), sr(s_t0)))
    E.op("s_add_u32 %s, %s, %s" % (sr(s_t0), sr(s_t0), sr(s_w)))
    E.op("s_lshl_b32 %s, %s, 10" % (sr(s_t0), sr(s_t0)))
    E.op("v_lshl_add_u32 %s, v1, 4, %s" % (vr(t + 3), sr(s_t0)))
    E.op("v_min_u32 %s, K_last - K_pc, %s" % (vr(t + 3), vr(t + 3)))
    E.op("s_lshr_b32 %s, s2, 6" % sr(s_t0))
    E.op("s_lshl_b32 %s, %s, 9" % (sr(s_t0), sr(s_t0)))
    E.op("v_lshl_add_u32 %s, v1, 3, %s" % (vr(t + 4), sr(s_t0)))
    A.op("s_waitcnt lgkmcnt(0)")
    E.op("s_getpc_b64 s[0:1]")
    E.label("K_pc")
    srd(E, sWS, 26, WS_SIZE)
    srd(E, sX, 4, S * D * 2)
    stamp(E, "entry")
    E.op("s_cmp_lg_u32 %s, 1" % sr(s_i))
    E.op("s_cbranch_scc1 K_nz")
    E.op("s_movk_i32 %s, 8192" % sr(s_t0))
    A.op("buffer_store_dword %s, %s, %s, 0 offen sc1" % (vr(t + 1), vr(t + 2), sr(sWS, 4)))
    A.op("buffer_store_dword %s, %s, %s, %s offen sc1" % (vr(t + 1), vr(t + 2), sr(sWS, 4), sr(s_t0)))
    A.op("s_waitcnt vmcnt(0)")
    A.op("s_atomic_add %s, s[24:25], 0" % sr(s_one))
    E.label("K_nz")
    E.op("global_load_dwordx2 %s, %s, s[18:19]" % (vr(VC, 2), vr(t + 4)))
    E.op("global_load_dword %s, %s, s[0:1]" % (vr(vJUNK), vr(t + 3)))
    srd(E, sWM, 20, D * 6 * D * 2)
    with W0(E, "K_g1d"):
        g1_dma(E)
    if opt("XDELAY", 0):
        E.op("s_mov_b32 %s, %s" % (sr(s_xg), sr(s_t2)))
        setup_addrs(E)
        E.op("s_mov_b32 %s, %s" % (sr(s_t2), sr(s_xg)))
        E.op("v_lshlrev_b32 %s, 7, v1" % vr(t + 2))
    for q in range(max(1, 1 << (mp - 1)) if mp else 1):
        if q:
            E.op("s_add_u32 %s, %s, 32768" % (sr(s_t2), sr(s_t2)))
        E.op("buffer_load_dword %s, %s, %s, %s offen%s" % (vr(vJUNK), vr(t + 2), sr(sX, 4), sr(s_t2), NT("X")))
    E.op("v_lshrrev_b32 %s, 3, v1" % vr(t))
    E.op("v_lshlrev_b32 %s, 11, %s" % (vr(t), vr(t)))
    E.op("v_add_u32 %s, %s, %s" % (vr(t), sr(s_x), vr(t)))
    E.op("v_and_b32 %s, 7, v1" % vr(t + 1))
    E.op("v_lshrrev_b32 %s, 4, v1" % vr(t + 2))
    E.op("v_xor_b32 %s, %s, %s" % (vr(t + 1), vr(t + 1), vr(t + 2)))
    E.op("v_lshl_add_u32 %s, %s, 4, %s" % (vr(VX), vr(t + 1), vr(t)))
    E.op("v_xor_b32 %s, 64, %s" % (vr(VX + 1), vr(VX)))
    E.op("v_add_u32 %s, %d, %s" % (vr(VX + 2), 2 * (8 * 2048 - 1024), vr(VX)))
    E.op("v_add_u32 %s, %d, %s" % (vr(VX + 3), 3 * (8 * 2048 - 1024), vr(VX + 1)))
    E.op("v_add_u32 %s, %d, %s" % (vr(VX + 1), 8 * 2048 - 1024, vr(VX + 1)))
    if not opt("XDELAY", 0):
        setup_addrs(E)


VX = AC[2]
VC = AC[0] + 4


def code_touch(lab, n=1):
    out = []
    for i in range(n):
        out.append(["s_add_u32 s70, s0, %s - K_pc + %d" % (lab, 8192 * i),
                    "s_addc_u32 s71, s1, 0",
                    "global_load_dword %s, %s, s[70:71]" % (vr(vJUNK), vr(vCP))])
    return out


def touch(srd_, v, pitch, const):
    return ["s_mul_i32 %s, %s, %d" % (sr(s_pf), sr(s_i), pitch),
            "s_add_u32 %s, %s, 0x%x" % (sr(s_pf), sr(s_pf), const),
            "buffer_load_dword %s, %s, %s, %s offen%s" % (vr(vJUNK), vr(v), sr(srd_, 4), sr(s_pf), NT("W"))]


def h_lane_addr(E, dst):
    t = T0
    E.op("v_lshrrev_b32 %s, 2, v1" % vr(t))
    E.op("v_lshlrev_b32 %s, 6, %s" % (vr(t), vr(t)))
    E.op("v_bfe_u32 %s, v1, 1, 1" % vr(t + 1))
    E.op("v_bfe_u32 %s, v1, 4, 1" % vr(t + 2))
    E.op("v_lshl_or_b32 %s, %s, 1, %s" % (vr(t + 1), vr(t + 2), vr(t + 1)))
    E.op("v_lshl_add_u32 %s, %s, 4, %s" % (vr(t), vr(t + 1), vr(t)))
    E.op("v_and_b32 %s, 1, v1" % vr(t + 1))
    E.op("v_lshl_add_u32 %s, %s, 3, %s" % (vr(dst), vr(t + 1), vr(t)))
    E.op("v_xor_b32 %s, 32, %s" % (vr(dst + 1), vr(dst)))


def h_src_lane(E, dst, pitch, t=T0, s_t2=s_t2):
    E.op("v_lshrrev_b32 %s, 2, v1" % vr(t))
    E.op("s_movk_i32 %s, %d" % (sr(s_t2), pitch))
    E.op("v_mul_u32_u24 %s, %s, %s" % (vr(t), sr(s_t2), vr(t)))
    E.op("v_bfe_u32 %s, v1, 4, 1" % vr(t + 1))
    E.op("v_lshlrev_b32 %s, 1, %s" % (vr(t + 1), vr(t + 1)))
    E.op("v_and_b32 %s, 3, v1" % vr(t + 2))
    E.op("v_xor_b32 %s, %s, %s" % (vr(t + 1), vr(t + 1), vr(t + 2)))
    E.op("v_lshl_add_u32 %s, %s, 4, %s" % (vr(dst), vr(t + 1), vr(t)))


def x_dma(E, u, lds, glob, tag):
    E.op(lds)
    E.op(glob)
    for e in range(4):
        E.op("buffer_load_dwordx4 %s, %s, %s offen offset:%d lds" % (vr(VX + e), sr(sX, 4), sr(s_d), 1024 * e), tag=tag)


s_xl, s_xg = 97, 98


XS = 6


def x_own(E, u):
    x_dma(E, u, "s_add_u32 m0, %s, %d" % (sr(s_xl), 4096 * (u % XS)), "s_add_u32 %s, %s, %d" % (sr(s_d), sr(s_xg), 128 * u), "x%d" % u)


class W0:
    def __init__(self, E, lab):
        self.E, self.lab = E, lab

    def __enter__(self):
        E = self.E
        E.op("s_cmp_lg_u32 %s, 0" % sr(s_w))
        E.op("s_cbranch_scc1 %s" % self.lab)
        self.st = (list(E.vq), list(E.lq), E.sm, E.ret)

    def __exit__(self, *a):
        E = self.E
        E.wait(lg=0)
        E.label(self.lab)
        E.vq, E.lq, E.sm, E.ret = self.st
        E.A.op("s_nop 4")


def g1_dma(E):
    t = T0 + 5
    s_cg, s_k4 = s_P, s_cnt
    E.op("s_bfe_u32 %s, s2, 0x10003" % sr(s_t0))
    E.op("s_and_b32 %s, s2, 7" % sr(s_t1))
    E.op("s_lshl_b32 %s, %s, 1" % (sr(s_t1), sr(s_t1)))
    E.op("s_or_b32 %s, %s, %s" % (sr(s_t0), sr(s_t0), sr(s_t1)))
    E.op("s_and_b32 %s, s2, 0x30" % sr(s_t1))
    E.op("s_or_b32 %s, %s, %s" % (sr(s_cg), sr(s_t0), sr(s_t1)))
    E.op("s_lshr_b32 %s, s2, 6" % sr(s_k4))
    vg = AC[0]
    h_src_lane(E, vg, 12288, AC[0] + 8, s_t1)
    for i in range(1, 4):
        E.op("v_add_u32 %s, %d, %s" % (vr(vg + i), i * (16 * 12288 - 1024), vr(vg)))

    def g1_issue():
        E.op("s_mul_i32 %s, %s, %d" % (sr(s_t0), sr(s_k4), 256 * 12288))
        E.op("s_lshl_b32 %s, %s, 6" % (sr(s_t1), sr(s_cg)))
        E.op("s_add_u32 %s, %s, %s" % (sr(s_t0), sr(s_t0), sr(s_t1)))
        for q in range(16):
            if q % 4 == 0:
                E.op("s_mov_b32 m0, %d" % (XCH + 1024 * q))
                if q:
                    E.op("s_add_u32 %s, %s, %d" % (sr(s_t0), sr(s_t0), 64 * 12288))
            E.op("buffer_load_dwordx4 %s, %s, %s offen offset:%d%s lds" % (vr(vg + q % 4), sr(sWM, 4), sr(s_t0), 1024 * (q % 4), NT("G")), tag="g1")
        stamp(E, "g1 issued")
    g1_issue()


def g1_start(E):
    t = T0
    s_cg, s_k4 = s_P, s_cnt
    E.vq[2:2] = [(set(), "g1", 0)] * 16
    E.ops(blk_off(s_t0, s_c, 0))
    E.op("v_lshl_add_u32 %s, v1, 7, %s" % (vr(t + 3), sr(s_t0)))
    E.op("v_cmp_gt_u32 vcc, 8, v1")
    E.op("v_mov_b32 %s, %s" % (vr(t + 4), sr(s_oob)))
    E.op("v_cndmask_b32 %s, %s, %s, vcc" % (vr(t + 3), vr(t + 4), vr(t + 3)))
    E.op("s_and_b32 %s, s2, 127" % sr(s_t0))
    E.op("s_lshl_b32 %s, %s, 7" % (sr(s_t0), sr(s_t0)))
    E.op("s_add_u32 %s, %s, %d" % (sr(s_t0), sr(s_t0), WS_CNT + 128 * 128))
    E.op("v_writelane_b32 %s, %s, 8" % (vr(t + 3), sr(s_t0)))
    E.op("v_mov_b32 %s, 0" % vr(t + 4))
    E.op("v_mov_b32 %s, 0" % vr(t + 5))
    E.op("buffer_store_dwordx2 %s, %s, %s, 0 offen sc1" % (vr(t + 4, 2), vr(t + 3), sr(sWS, 4)))
    vc = VC
    c4, e4 = AC[0] + 8, AC[0] + 12
    E.op("v_lshlrev_b32 %s, 16, %s" % (vr(c4), vr(vc)))
    E.op("v_and_b32 %s, 0xffff0000, %s" % (vr(c4 + 1), vr(vc)))
    E.op("v_lshlrev_b32 %s, 16, %s" % (vr(c4 + 2), vr(vc + 1)))
    E.op("v_and_b32 %s, 0xffff0000, %s" % (vr(c4 + 3), vr(vc + 1)))
    for r in range(4):
        E.op("v_mul_f32 %s, 0xbfb8aa3b, %s" % (vr(e4 + r), vr(c4 + r)))
    for r in range(4):
        E.op("v_exp_f32 %s, %s" % (vr(e4 + r), vr(e4 + r)))
    for r in range(4):
        E.op("v_add_f32 %s, 1.0, %s" % (vr(e4 + r), vr(e4 + r)))
    for r in range(4):
        E.op("v_rcp_f32 %s, %s" % (vr(e4 + r), vr(e4 + r)))
    for r in range(4):
        E.op("v_mul_f32 %s, %s, %s" % (vr(c4 + r), vr(c4 + r), vr(e4 + r)))
    E.op("v_cvt_pk_bf16_f32 %s, %s, %s" % (vr(e4), vr(c4), vr(c4 + 1)))
    E.op("v_cvt_pk_bf16_f32 %s, %s, %s" % (vr(e4 + 1), vr(c4 + 2), vr(c4 + 3)))
    E.op("v_lshrrev_b32 %s, 3, v1" % vr(t))
    E.op("v_lshlrev_b32 %s, 6, %s" % (vr(t), vr(t)))
    E.op("v_and_b32 %s, 3, v1" % vr(t + 1))
    E.op("v_lshl_add_u32 %s, %s, 4, %s" % (vr(t), vr(t + 1), vr(t)))
    E.op("v_bfe_u32 %s, v1, 2, 1" % vr(t + 1))
    E.op("v_lshl_add_u32 %s, %s, 3, %s" % (vr(t), vr(t + 1), vr(t)))
    E.op("v_add_u32 %s, %d, %s" % (vr(t), CS, vr(t)))
    E.op("ds_write_b64 %s, %s" % (vr(t), vr(e4, 2)))
    cf = U
    E.op("v_and_b32 %s, 48, v1" % vr(t + 3))
    E.op("v_add_u32 %s, %d, %s" % (vr(t + 3), CS, vr(t + 3)))
    E.wait(lg=0)
    for ks in range(8):
        E.op("ds_read_b128 %s, %s offset:%d" % (vr(cf + 4 * ks, 4), vr(t + 3), 64 * ks))
    E.op("v_add_u32 %s, %d, %s" % (vr(vA2), XCH, vr(aH[0][0])))
    E.op("v_add_u32 %s, %d, %s" % (vr(vSP), XCH, vr(aH[0][1])))
    E.op("s_lshl_b32 %s, %s, 13" % (sr(s_t0), sr(s_k4)))
    E.op("s_lshl_b32 %s, %s, 7" % (sr(s_t1), sr(s_cg)))
    E.op("s_add_u32 %s, %s, %s" % (sr(s_t0), sr(s_t0), sr(s_t1)))
    E.op("s_add_u32 %s, %s, %d" % (sr(s_t0), sr(s_t0), WS_P1))
    E.op("v_and_b32 %s, 15, v1" % vr(t))
    E.op("v_and_b32 %s, 48, v1" % vr(t + 1))
    E.op("v_lshl_add_u32 %s, %s, 6, %s" % (vr(t + 1), vr(t), vr(t + 1)))
    E.op("v_add_u32 %s, %s, %s" % (vr(t + 1), sr(s_t0), vr(t + 1)))
    E.op("v_cmp_gt_u32 vcc, 2, %s" % vr(t))
    E.op("v_mov_b32 %s, %s" % (vr(t + 2), sr(s_oob)))
    E.op("v_cndmask_b32 %s, %s, %s, vcc" % (vr(vA0), vr(t + 2), vr(t + 1)))
    E.op("s_and_b32 %s, s2, 7" % sr(s_t0))
    E.op("s_lshl_b32 %s, %s, 11" % (sr(s_t0), sr(s_t0)))
    E.op("v_lshl_add_u32 %s, v1, 7, %s" % (vr(t + 1), sr(s_t0)))
    E.op("v_cmp_gt_u32 vcc, 16, v1")
    E.op("v_cndmask_b32 %s, %s, %s, vcc" % (vr(vA1), vr(t + 2), vr(t + 1)))


def g1_compute(E):
    t = T0
    stamp(E, "g1 landed")
    wfr = WF
    d0 = AC[0] + 16
    cf = U
    E.op("v_and_b32 %s, 15, v1" % vr(t))
    E.op("v_cmp_eq_u32 vcc, 1, %s" % vr(t))
    for ks in range(8):
        for tp in range(2):
            for h in range(2):
                E.op("ds_read_b64_tr_b16 %s, %s offset:%d" % (vr(wfr + 8 * ks + 4 * tp + 2 * h, 2), vr((vA2, vSP)[tp]), 1024 * (2 * ks + h)))
    for ks in range(8):
        for tp in range(2):
            E.op("v_mfma_f32_16x16x32_bf16 %s, %s, %s, %s" % (vr(d0 + 4 * tp, 4), vr(wfr + 8 * ks + 4 * tp, 4), vr(cf + 4 * ks, 4),
                                                             "0" if ks == 0 else vr(d0 + 4 * tp, 4)))
    for r in range(4):
        E.op("v_cndmask_b32 %s, %s, %s, vcc" % (vr(d0 + r), vr(d0 + r), vr(d0 + 4 + r)))
    E.op("buffer_store_dwordx4 %s, %s, %s, 0 offen sc1" % (vr(d0, 4), vr(vA0), sr(sWS, 4)))
    E.A.op("s_load_dword %s, s[24:25], 0" % sr(s_P))


def g1_signal(E, younger):
    A = E.A
    t = T0
    E.op("s_mov_b32 %s, 0" % sr(s_cnt))
    A.op("s_waitcnt vmcnt(%d) lgkmcnt(0)" % younger)
    E.label("K_dbgchk")
    E.op("s_cmp_lg_u32 %s, 0" % sr(s_P))
    E.op("s_cbranch_scc1 K_dbgok")
    E.op("v_mov_b32 %s, 0" % vr(t))
    E.op("s_sleep 4")
    A.op("global_load_dword %s, %s, s[24:25] sc1" % (vr(t + 1), vr(t)))
    E.op("s_add_u32 %s, %s, 1" % (sr(s_cnt), sr(s_cnt)))
    A.op("s_waitcnt vmcnt(0)")
    E.op("v_readfirstlane_b32 %s, %s" % (sr(s_P), vr(t + 1)))
    E.op("s_cmp_lt_u32 %s, 0x%x" % (sr(s_cnt), LIMIT))
    A.op("s_nop 3")
    E.op("s_cbranch_scc1 K_dbgchk")
    E.label("K_dbgok")
    A.op(vsignal(vA1))
    stamp(E, "h0 signalled")


def setup_addrs(E):
    t = T0
    srd(E, sQKV, 6, D * 3 * D * 2)
    srd(E, sWO, 8, D * D * 2)
    srd(E, sW1, 12, D * F * 2)
    srd(E, sW3, 14, D * F * 2)
    srd(E, sW2, 16, D * F * 2)
    srd(E, sOUT, 22, S * D * 2)
    E.op("s_cmp_ge_u32 %s, 2" % sr(s_w))
    E.op("s_cselect_b32 s%d, s14, s12" % sWH)
    E.op("s_cselect_b32 s%d, s15, s13" % (sWH + 1))
    E.op("s_mov_b32 s%d, 0x%x" % (sWH + 2, D * F * 2))
    E.op("s_mov_b32 s%d, 0x20000" % (sWH + 3))
    E.op("v_bfe_u32 %s, v1, 2, 3" % vr(t))
    E.op("v_and_b32 %s, 6, %s" % (vr(t + 1), vr(t)))
    E.op("v_bfe_u32 %s, v1, 1, 1" % vr(t + 2))
    E.op("v_xor_b32 %s, %s, %s" % (vr(t + 1), vr(t + 1), vr(t + 2)))
    E.op("v_lshlrev_b32 %s, 4, %s" % (vr(t + 1), vr(t + 1)))
    E.op("v_lshl_add_u32 %s, %s, 7, %s" % (vr(t + 1), vr(t), vr(t + 1)))
    E.op("v_and_b32 %s, 1, v1" % vr(t + 2))
    E.op("v_lshl_add_u32 %s, %s, 3, %s" % (vr(t + 1), vr(t + 2), vr(t + 1)))
    E.op("v_lshrrev_b32 %s, 5, v1" % vr(t + 2))
    E.op("v_lshl_add_u32 %s, %s, 13, %s" % (vr(aW[0][0]), vr(t + 2), vr(t + 1)))
    for q in range(1, 4):
        E.op("v_xor_b32 %s, %d, %s" % (vr(aW[0][q]), 32 * q, vr(aW[0][0])))
    for q in range(4):
        E.op("v_add_u32 %s, 0x10000, %s" % (vr(aW[1][q]), vr(aW[0][q])))
    h_lane_addr(E, aH[0][0])
    for q in range(2):
        E.op("v_add_u32 %s, 0x10000, %s" % (vr(aH[1][q]), vr(aH[0][q])))
    E.op("v_lshrrev_b32 %s, 3, v1" % vr(t))
    E.op("v_and_b32 %s, 6, %s" % (vr(t + 1), vr(t)))
    E.op("v_and_b32 %s, 7, v1" % vr(t + 2))
    E.op("v_xor_b32 %s, %s, %s" % (vr(t + 1), vr(t + 1), vr(t + 2)))
    E.op("v_lshlrev_b32 %s, 4, %s" % (vr(t + 1), vr(t + 1)))
    E.op("s_lshl_b32 %s, %s, 3" % (sr(s_t0), sr(s_w)))
    E.op("v_add_u32 %s, %s, %s" % (vr(t + 2), sr(s_t0), vr(t)))
    for vD, pitch in ((vD2, 2048), (vDf, 7168), (vDm, 12288)):
        E.op("s_movk_i32 %s, %d" % (sr(s_t1), pitch))
        E.op("v_mad_u32_u24 %s, %s, %s, %s" % (vr(vD), vr(t + 2), sr(s_t1), vr(t + 1)))
        for i in range(1, 4):
            E.op("v_add_u32 %s, %d, %s" % (vr(vD + i), i * (32 * pitch - 1024), vr(vD)))
    E.op("s_and_b32 %s, %s, 1" % (sr(s_t0), sr(s_w)))
    E.op("s_lshl_b32 %s, %s, 4" % (sr(s_t0), sr(s_t0)))
    E.op("s_lshr_b32 %s, %s, 1" % (sr(s_t1), sr(s_w)))
    E.op("s_lshl_b32 %s, %s, 2" % (sr(s_t1), sr(s_t1)))
    E.op("s_add_u32 %s, %s, %s" % (sr(s_t1), sr(s_t0), sr(s_t1)))
    E.op("v_and_b32 %s, 4, %s" % (vr(t + 2), vr(t)))
    E.op("v_add3_u32 %s, %s, %s, %s" % (vr(t + 2), vr(t + 2), vr(t), sr(s_t1)))
    E.op("s_movk_i32 %s, 6144" % sr(s_t1))
    E.op("v_mad_u32_u24 %s, %s, %s, %s" % (vr(vDq), vr(t + 2), sr(s_t1), vr(t + 1)))
    for i in range(1, 4):
        E.op("v_add_u32 %s, %d, %s" % (vr(vDq + i), i * (32 * 6144 - 1024), vr(vDq)))
    h_src_lane(E, vDh, 7168)
    E.op("s_mul_i32 %s, %s, 7168" % (sr(s_t0), sr(s_t0)))
    E.op("v_add_u32 %s, %s, %s" % (vr(vDh), sr(s_t0), vr(vDh)))
    for i in range(1, 4):
        E.op("v_add_u32 %s, %d, %s" % (vr(vDh + i), i * (32 * 7168 - 1024), vr(vDh)))
    E.op("s_lshl_b32 %s, %s, 7" % (sr(s_bq), sr(s_c)))
    E.op("s_and_b32 %s, %s, 3" % (sr(s_t0), sr(s_c)))
    E.op("s_lshl_b32 %s, %s, 2" % (sr(s_cw), sr(s_t0)))
    E.op("s_lshr_b32 %s, %s, 2" % (sr(s_t1), sr(s_c)))
    E.op("s_add_u32 %s, %s, %s" % (sr(s_cw), sr(s_cw), sr(s_t1)))
    E.op("s_lshl_b32 %s, %s, 7" % (sr(s_bo), sr(s_cw)))
    E.op("s_lshr_b32 %s, s2, 6" % sr(s_t0))
    E.op("s_mul_i32 %s, %s, %d" % (sr(s_bm), sr(s_t0), 256 * 12288))
    E.op("s_and_b32 %s, s2, 63" % sr(s_t0))
    E.op("s_lshl_b32 %s, %s, 7" % (sr(s_t0), sr(s_t0)))
    E.op("s_add_u32 %s, %s, %s" % (sr(s_bm), sr(s_bm), sr(s_t0)))
    E.op("s_add_u32 %s, %s, 4096" % (sr(s_bm), sr(s_bm)))
    for v in (vA0, vA1):
        E.op("v_mov_b32 %s, %s" % (vr(v), sr(s_oob)))
    E.op("s_lshl_b32 %s, %s, 11" % (sr(s_t0), sr(s_w)))
    E.op("v_lshl_add_u32 %s, v1, 5, %s" % (vr(vCP), sr(s_t0)))
    E.op("v_cmp_gt_u32 vcc, 16, v1")
    E.op("v_mov_b32 %s, %s" % (vr(t + 1), sr(s_oob)))
    E.op("v_lshlrev_b32 %s, 7, v1" % vr(t))
    E.op("v_cndmask_b32 %s, %s, %s, vcc" % (vr(vPF), vr(t + 1), vr(t)))
    E.op("v_cmp_gt_u32 vcc, 8, v1")
    E.op("s_lshr_b32 %s, s2, 4" % sr(s_oH0))
    E.op("v_cndmask_b32 %s, %s, %s, vcc" % (vr(vTH), vr(t + 1), vr(t)))
    E.op("s_lshl_b32 %s, %s, 7" % (sr(s_oH0), sr(s_oH0)))
    E.ops(blk_off(s_oT, s_w, 5))
    E.op("s_lshr_b32 %s, s2, 3" % sr(s_t0))
    E.op("s_lshl_b32 %s, %s, 2" % (sr(s_t0), sr(s_t0)))
    E.op("s_add_u32 %s, %s, %s" % (sr(s_t0), sr(s_t0), sr(s_w)))
    E.op("s_mul_i32 %s, %s, %d" % (sr(s_t0), sr(s_t0), 8 * 6144))
    E.op("s_and_b32 %s, %s, 8" % (sr(s_t1), sr(s_c)))
    E.op("s_lshl_b32 %s, %s, 7" % (sr(s_t1), sr(s_t1)))
    E.op("s_add_u32 %s, %s, %s" % (sr(s_t0), sr(s_t0), sr(s_t1)))
    E.op("s_add_u32 %s, %s, 384" % (sr(s_t0), sr(s_t0)))
    E.op("v_and_b32 %s, 7, v1" % vr(t))
    E.op("v_mul_u32_u24 %s, 6144, %s" % (vr(t), vr(t)))
    E.op("v_add_u32 %s, %s, %s" % (vr(t), sr(s_t0), vr(t)))
    E.op("v_cndmask_b32 %s, %s, %s, vcc" % (vr(vA3), vr(t + 1), vr(t)))
    E.op("s_lshr_b32 %s, s2, 3" % sr(s_t0))
    E.op("s_lshl_b32 %s, %s, 15" % (sr(s_t0), sr(s_t0)))
    E.op("s_add_u32 %s, %s, %s" % (sr(s_t0), sr(s_t0), sr(s_LW)))
    E.op("v_lshl_add_u32 %s, v1, 10, %s" % (vr(t), sr(s_t0)))
    E.op("v_add_u32 %s, %s, %s" % (vr(vTF), vr(t), vr(vA3)))
    E.op("v_and_b32 %s, 31, v0" % vr(t))
    E.op("v_mul_u32_u24 %s, 272, %s" % (vr(t), vr(t)))
    E.op("v_add_u32 %s, %d, %s" % (vr(t), TD + 256, vr(t)))
    for i in range(4):
        E.op("v_mov_b32 %s, 0" % vr(t + 2 + i))
    E.op("ds_write_b128 %s, %s" % (vr(t), vr(t + 2, 4)))


def x_stream(E, XRES, after):
    t = T0
    E.op("s_mul_i32 %s, %s, %d" % (sr(s_xl), sr(s_w), 4096 * XS))
    E.op("s_lshl_b32 %s, %s, 16" % (sr(s_xg), sr(s_w)))
    with W0(E, "K_g1a"):
        g1_start(E)
    for u in range(4):
        x_own(E, u)
    rx = AC[2] + 4
    E.op("v_and_b32 %s, 15, v1" % vr(t))
    E.op("v_lshrrev_b32 %s, 1, %s" % (vr(t + 1), vr(t)))
    E.op("v_lshrrev_b32 %s, 4, v1" % vr(t + 2))
    E.op("v_xor_b32 %s, %s, %s" % (vr(t + 3), vr(t + 1), vr(t + 2)))
    E.op("v_lshlrev_b32 %s, 4, %s" % (vr(t + 3), vr(t + 3)))
    E.op("v_lshl_add_u32 %s, %s, 7, %s" % (vr(t), vr(t), sr(s_xl)))
    E.op("v_add_u32 %s, %s, %s" % (vr(rx), vr(t), vr(t + 3)))
    E.op("v_xor_b32 %s, 64, %s" % (vr(rx + 1), vr(rx)))
    rr = AC[1]
    E.op("v_lshrrev_b32 %s, 5, v1" % vr(t + 3))
    E.op("v_xor_b32 %s, %s, %s" % (vr(t + 3), vr(t + 3), vr(t + 1)))
    E.op("v_lshl_add_u32 %s, %s, 4, %s" % (vr(t), vr(t + 3), vr(t)))
    E.op("v_and_b32 %s, 1, %s" % (vr(t + 2), vr(t + 2)))
    E.op("v_lshl_add_u32 %s, %s, 3, %s" % (vr(rr), vr(t + 2), vr(t)))
    for q in range(1, 4):
        E.op("v_xor_b32 %s, %d, %s" % (vr(rr + q), 32 * q, vr(rr)))
    ones = AC[2] + 8
    for i in range(4):
        E.op("v_mov_b32 %s, 0x3f803f80" % vr(ones + i))
    vsum = [AC[1] + 4, AC[1] + 8]
    vsq = [AC[1] + 12, AC[1] + 16]

    def stats(u):
        for kk in range(2):
            for f in range(2):
                x = XR(2 * u + kk, f)
                z = (u == 0 and kk == 0)
                E.op("v_mfma_f32_16x16x32_bf16 %s, %s, %s, %s" % (vr(vsum[f], 4), vr(ones, 4), x, "0" if z else vr(vsum[f], 4)))
                E.op("v_mfma_f32_16x16x32_bf16 %s, %s, %s, %s" % (vr(vsq[f], 4), x, x, "0" if z else vr(vsq[f], 4)))
    def reads(u):
        for kk in range(2):
            for f in range(2):
                E.op("ds_read_b128 %s, %s offset:%d" % (XR(2 * u + kk, f), vr(rx + kk), 4096 * (u % XS) + 2048 * f))
    LA = 4
    SIG = opt("SIGAT", 2)
    for u in range(17):
        if u < 16:
            E.wait_tag("x%d" % u)
        if u == 0:
            stamp(E, "x first")
            with W0(E, "K_g1c"):
                g1_compute(E)
        if u == SIG:
            with W0(E, "K_g1s"):
                g1_signal(E, 4 * SIG)
        if u < 16:
            reads(u)
        if u + LA < 16:
            x_own(E, u + LA)
        elif u + LA == 16:
            x_dma(E, 16, "s_add_u32 m0, %s, %d" % (sr(s_xl), 4096 * (16 % XS)), "s_add_u32 %s, %s, %s" % (sr(s_d), sr(s_xg), sr(s_bo)), "xr")
        if u == 16:
            E.wait_tag("xr")
            for f in range(2):
                for q in range(4):
                    E.op("ds_read_b64 %s, %s offset:%d" % (vr(XRES[f] + 2 * q, 2), vr(rr + q), 4096 * (16 % XS) + 2048 * f))
        if u:
            stats(u - 1)
        if u == 12:
            poll8_issue(E, 0, "h0", 3)
        if u == 13:
            poll8_check(E, 0, "h0", 3)
            stamp(E, "h0 seen")
            E.op("s_barrier")
            after()
    return vsum, vsq


class Rec:
    def __init__(self):
        self.l = []

    def op(self, t, tag=None):
        self.l.append(t)

    def ops(self, l):
        self.l += l


def singles(ops):
    return [X(t) for t in ops]


def finish(E):
    A = E.A
    E.label("K_fin")
    if "stamp" in DBG:
        E.force_wait(vm=True, lg=True)
        stamp(E, "end")
        E.op("s_lshl_b32 %s, s2, 2" % sr(s_t0))
        E.op("s_add_u32 %s, %s, %s" % (sr(s_t0), sr(s_t0), sr(s_w)))
        E.op("s_lshl_b32 %s, %s, 9" % (sr(s_t0), sr(s_t0)))
        E.op("s_add_u32 %s, %s, 0x%x" % (sr(s_t0), sr(s_t0), WS_STAMP))
        E.op("v_lshlrev_b32 v2, 2, v1")
        E.op("buffer_store_dword %s, v2, %s, %s offen" % (vr(vST0), sr(sWS, 4), sr(s_t0)))
        E.op("buffer_store_dword %s, v2, %s, %s offen offset:256" % (vr(vST1), sr(sWS, 4), sr(s_t0)))
    E.label("K_end")
    A.op("s_endpgm")
    A.hist = []
    for t in E.tail:
        if t.endswith(":"):
            A.label(t[:-1])
        else:
            A.op(t)
    A.label("K_last")
    A.raw(".fill 4096, 4, 0xbf800000")


def write(E, dst):
    ref = open(os.path.join(os.path.dirname(os.path.abspath(__file__)), "..", NAME + ".s.ref")).read()
    head = [l for l in ref.splitlines() if l.startswith(";") and "@launch" not in l]
    out = list(head)
    out.append("; @launch grid=(256,1,1) block=(256,1,1) lds=163840")
    if "stamp" in DBG:
        out.append("; stamps: " + "|".join(STAMP_NAMES))
    out.append('.amdgcn_target "amdgcn-amd-amdhsa--gfx950"')
    out.append(".text")
    out.append("\n".join(l.strip() for l in E.A.lines))
    out.append('.section .rodata,"a"')
    out.append(".p2align 6")
    out.append(".amdhsa_kernel %s" % L)
    out.append("  .amdhsa_next_free_vgpr 512")
    out.append("  .amdhsa_next_free_sgpr 102")
    out.append("  .amdhsa_accum_offset 256")
    out.append("  .amdhsa_group_segment_fixed_size 0")
    out.append("  .amdhsa_kernarg_size 96")
    out.append("  .amdhsa_user_sgpr_count 2")
    out.append("  .amdhsa_user_sgpr_kernarg_segment_ptr 1")
    out.append("  .amdhsa_system_sgpr_workgroup_id_x 1")
    out.append("  .amdhsa_float_denorm_mode_32 3")
    out.append(".end_amdhsa_kernel")
    txt = "\n".join(out) + "\n"
    open(dst, "w").write(txt)
    print("lines %d bytes %d nops %d" % (txt.count("\n"), len(txt), E.A.nops))


if __name__ == "__main__":
    import gen3_body
    gen3_body.main(sys.argv[1] if len(sys.argv) > 1 else os.path.join(os.path.dirname(os.path.abspath(__file__)), "..", NAME + ".s"))
```

```python
from gen3 import *
import gen3 as G


DGRP = [(0, 0), (128, 0), (1024, 0), (1152, 0), (3072, 1), (2048, 0), (2176, 0)]
SBF = [s_bq, s_bf, s_bf2]
LAG = opt("LAG", 6)
LAG2 = 2
N3 = opt("N3", 3)
DORD = [(j, g) for g in range(N3) for j in range(3)] + [(j, g) for g in range(N3, 5) for j in range(2)] + \
       [(0, 5), (1, 5), (0, 6), (1, 6)] + [(2, g) for g in range(N3, 7)] + [(3, g) for g in range(7)]


def build_stages():
    ix = {}

    def mitems(slot):
        out = []
        for ks in range(8):
            a = vr(TX, 4)
            out.append((["v_mfma_f32_16x16x32_bf16 %s, %%W, %s, %s" % (a, vr(AC[1] + 4 * ks, 4), "0" if ks == 0 else a)],
                        ["ds_read_b64_tr_b16 %%W, %s offset:%d" % (vr(vA2), (slot & 1) * 32768 + h * 16384 + ks * 1024) for h in range(2)]))
        return out

    def mstage():
        ix["M"] = len(STAGES)
        add_stage("M", sWM, [(s_bm, 0, 4, vDm), (s_bm, 128 * 12288, 4, vDm)], mitems)
    ix["K"] = sweep("K", sQKV, vDq, s_bq, 6144, 2048, 0)
    for ks in range(32 - LAG):
        STAGES[ks // 8].items[4 * (ks % 8) + 3][0].extend(mod_mfma(2 * (ks + LAG)) + mod_mfma(2 * (ks + LAG) + 1))
    mstage()
    ix["V"] = sweep("V", sQKV, vDq, s_bq, 6144, 4096, 1, swap=True)
    ix["Q"] = sweep("Q", sQKV, vDq, s_bq, 6144, 0, 0)
    ix["O"] = sweep("O", sWO, vD2, s_bo, 2048, 0, 0)
    hst = lambda q: gstages("H", sWH, [(s_bh, 128 * g * 7168, vDh, 4, 4 * g) for g in (2 * q, 2 * q + 1)], himg=True, q0=q)
    ix["G0"] = sweep("G0", sW1, vDf, SBF[0], 7168, 0, 0)
    for n in range(2 * LAG2, 64):
        ks = n // 2 - LAG2
        STAGES[ix["G0"] + ks // 8].items[4 * (ks % 8) + 1 + 2 * (n & 1)][0].extend(mod2_mfma(n))
    ix["H0"] = hst(0)
    ix["U0"] = sweep("U0", sW3, vDf, SBF[0], 7168, 0, 2)
    ix["H1"] = hst(1)
    ix["G1"] = sweep("G1", sW1, vDf, SBF[1], 7168, 0, 1)
    ix["H2"] = hst(2)
    ix["U1"] = sweep("U1", sW3, vDf, SBF[1], 7168, 0, 2)
    ix["H3"] = hst(3)
    ix["G2"] = sweep("G2", sW1, vDf, SBF[2], 7168, 0, 0)
    ix["U2"] = sweep("U2", sW3, vDf, SBF[2], 7168, 0, 2)
    DS = (1, 3, 4, 0)
    dg = lambda j, gi: (s_bd4 + j, DGRP[gi][0] * 2048, vD2 if DGRP[gi][1] else vDd, DS[j], 4 * gi)
    ix["DA"] = gstages("DA", sW2, [dg(j, g) for j, g in DORD])
    return ix


KF = AC[2]
KP = AC[2] + 16
VP = U
XRES = [AC[2] + 24, U + 24]


def kf(f, hd):
    return KF + 8 * f + 4 * hd


def vp(hd, tau):
    return VP + 6 * (2 * hd + tau)


vHF, vG2, vS2, vCSR, vHW8, vHG8, vXR16, vXR8 = [CM + i for i in range(8)]


def grouped(ops):
    out = []
    for t in ops:
        mn = t.split()[0]
        glue = mn.startswith(("s_cselect", "v_cndmask", "s_addc"))
        if glue:
            out[-1].append(t)
        else:
            out.append([t])
    return [X(*g) for g in out]


def pre_m(mslot):
    t = T0 + 3
    o = ["s_lshl_b32 %s, %s, 5" % (sr(s_t0), sr(s_w)),
         "v_xor_b32 %s, %s, %s" % (vr(vA2), sr(s_t0), vr(aW[mslot >> 1][0])),
         "v_and_b32 %s, 48, v1" % vr(vCSR),
         "v_add_u32 %s, %d, %s" % (vr(vCSR), CS, vr(vCSR))]
    o += ["s_lshr_b32 %s, s2, 6" % sr(s_t0), "s_lshl_b32 %s, %s, 14" % (sr(s_t0), sr(s_t0)),
          "s_and_b32 %s, s2, 63" % sr(s_t1), "s_lshl_b32 %s, %s, 8" % (sr(s_t1), sr(s_t1)),
          "s_add_u32 %s, %s, %s" % (sr(s_t0), sr(s_t0), sr(s_t1)), "s_lshl_b32 %s, %s, 6" % (sr(s_t1), sr(s_w)),
          "s_add_u32 %s, %s, %s" % (sr(s_t0), sr(s_t0), sr(s_t1)), "s_add_u32 %s, %s, %d" % (sr(s_t0), sr(s_t0), WS_P2),
          "v_add_u32 %s, %s, v1" % (vr(vG2), sr(s_t0)),
          "v_mov_b32 %s, %s" % (vr(t + 1), sr(s_oob)),
          "v_and_b32 %s, 15, v1" % vr(t),
          "v_cmp_eq_u32 vcc, 0, %s" % vr(t),
          "v_cndmask_b32 %s, %s, %s, vcc" % (vr(vG2), vr(t + 1), vr(vG2)),
          "s_and_b32 %s, s2, 7" % sr(s_t0), "s_lshl_b32 %s, %s, 11" % (sr(s_t0), sr(s_t0)),
          "s_add_u32 %s, %s, %d" % (sr(s_t0), sr(s_t0), WS_CNT + 128 * 128),
          "v_lshl_add_u32 %s, v1, 7, %s" % (vr(vS2), sr(s_t0)),
          "v_cmp_gt_u32 vcc, 16, v0",
          "v_cndmask_b32 %s, %s, %s, vcc" % (vr(vS2), vr(t + 1), vr(vS2))]
    return o


def pre_halo():
    t = T0 + 3
    o = ["s_lshl_b32 %s, %s, 4" % (sr(s_t2), sr(s_rb)), "s_add_u32 %s, %s, %s" % (sr(s_t2), sr(s_t2), sr(s_c)),
         "v_lshrrev_b32 %s, 1, %s" % (vr(t), vr(vL16)),
         "s_lshl_b32 %s, %s, 12" % (sr(s_t0), sr(s_w)),
         "s_add_u32 %s, %s, %d" % (sr(s_t0), sr(s_t0), XCH),
         "v_add_u32 %s, %s, %s" % (vr(vXR16), sr(s_t0), vr(vL16)),
         "v_add_u32 %s, %s, %s" % (vr(vXR8), sr(s_t0), vr(t)),
         "v_add_u32 %s, 4096, %s" % (vr(vA0), vr(vXR16)),
         "v_add_u32 %s, 4096, %s" % (vr(vHW8), vr(vXR8)),
         "s_lshl_b32 %s, %s, 12" % (sr(s_t0), sr(s_t2)),
         "s_add_u32 %s, %s, 0x%x" % (sr(s_t0), sr(s_t0), WS_HALO),
         "s_cmp_eq_u32 %s, 3" % sr(s_w),
         "s_cselect_b32 %s, %s, %s" % (sr(s_t1), sr(s_t0), sr(s_oob)),
         "v_add_u32 %s, %s, %s" % (vr(vA1), sr(s_t1), vr(vL16)),
         "v_add_u32 %s, %s, %s" % (vr(vHG8), sr(s_t1), vr(t)),
         "s_sub_u32 %s, %s, 65536" % (sr(s_t0), sr(s_t0)),
         "s_cmp_eq_u32 %s, 0" % sr(s_w),
         "s_cselect_b32 %s, %s, 0" % (sr(s_t1), sr(s_rb)),
         "s_cselect_b32 %s, 0, 16384" % sr(s_hm0),
         "s_add_u32 %s, %s, %d" % (sr(s_hm0), sr(s_hm0), XCH),
         "s_cmp_lg_u32 %s, 0" % sr(s_t1),
         "s_cselect_b32 %s, %s, %s" % (sr(s_t0), sr(s_t0), sr(s_oob)),
         "v_add_u32 %s, %s, %s" % (vr(vHF), sr(s_t0), vr(vL16)),
         "s_lshl_b32 %s, %s, 10" % (sr(s_t2), sr(s_t2)),
         "s_add_u32 %s, %s, %d" % (sr(s_t2), sr(s_t2), WS_CNT + 256 * 128),
         "s_cmp_lg_u32 %s, 0" % sr(s_t1),
         "s_cselect_b32 %s, %s, %s" % (sr(s_oHP), sr(s_t2), sr(s_oT)),
         "s_cselect_b32 %s, 1, 0" % sr(s_eH),
         "s_add_u32 %s, %s, 16384" % (sr(s_t2), sr(s_t2)),
         "s_cmp_eq_u32 %s, 3" % sr(s_w),
         "s_cselect_b32 %s, %s, 15" % (sr(s_t0), sr(s_rb)),
         "s_cmp_lt_u32 %s, 15" % sr(s_t0),
         "s_cselect_b32 %s, %s, %s" % (sr(s_oHS), sr(s_t2), sr(s_oT)),
         "s_cselect_b32 %s, 1, 0" % sr(s_hsv)]
    return o


def k_final():
    q = [Ex("delay", 3)]
    for f in (1, 0):
        for hd in range(2):
            a = acc_reg(0, f, 2 * hd)
            q += singles(["v_mul_f32 %s, %s, %s" % (vr(a + i), vr(RC + f), vr(a + i)) for i in range(8)])
            q += singles(["v_cvt_pk_bf16_f32 %s, %s, %s" % (vr(kf(f, hd) + i), vr(a + 2 * i), vr(a + 2 * i + 1)) for i in range(4)])
        if f == 1:
            for hd in range(2):
                q.append(X("buffer_store_dwordx4 %s, %s, %s, 0 offen offset:%d sc1" % (vr(kf(1, hd), 4), vr(vA1), sr(sWS, 4), 1024 * hd), tag="hk%d" % hd))
                q.append(X("ds_write_b128 %s, %s offset:%d" % (vr(vA0), vr(kf(1, hd), 4), 1024 * hd)))
    return q


def v_final():
    q = [Ex("delay", 3)]
    for f in (1, 0):
        for t in range(4):
            a = acc_reg(1, f, t)
            d = vp(t >> 1, t & 1) + 2 + 2 * f
            q += singles(["v_mul_f32 %s, %s, %s" % (vr(a + r), vr(RT + 4 * f + r), vr(a + r)) for r in range(4)])
            q += singles(["v_cvt_pk_bf16_f32 %s, %s, %s" % (vr(d + i), vr(a + 2 * i), vr(a + 2 * i + 1)) for i in range(2)])
        if f == 1:
            for t in range(4):
                d = vp(t >> 1, t & 1) + 4
                q.append(X("buffer_store_dwordx2 %s, %s, %s, 0 offen offset:%d sc1" % (vr(d, 2), vr(vHG8), sr(sWS, 4), 2048 + 512 * t), tag="hv%d" % t))
                q.append(X("ds_write_b64 %s, %s offset:%d" % (vr(vHW8), vr(d, 2), 2048 + 512 * t)))
    q += singles(["v_mov_b32 %s, 0x3f803f80" % vr(RT + i) for i in range(4)]) + [Ex("bar")]
    return q


def halo_fetch(off):
    return ["s_mov_b32 m0, %s" % sr(s_hm0),
            "buffer_load_dwordx4 %s, %s, 0 offen offset:%d sc1 lds" % (vr(vHF), sr(sWS, 4), off),
            "buffer_load_dwordx4 %s, %s, 0 offen offset:%d sc1 lds" % (vr(vHF), sr(sWS, 4), off + 1024)]


BP, BO, BF = vDf, vDe, vDh
SEL = [vSP, vA2]
RQ = T0 + 2


def masks(E):
    t = T0
    E.op("v_and_b32 %s, 15, v1" % vr(t))
    E.op("v_lshrrev_b32 %s, 4, v1" % vr(t + 1))
    E.op("v_lshlrev_b32 %s, 2, %s" % (vr(t + 1), vr(t + 1)))
    E.op("v_sub_u32 %s, %s, %s" % (vr(t + 1), vr(t), vr(t + 1)))
    E.op("s_mov_b32 %s, 0x80000001" % sr(s_t0))
    E.op("v_mov_b32 %s, %s" % (vr(t + 3), f32hex(-1.0e30)))
    for r in range(4):
        E.op("v_sub_u32 %s, %d, %s" % (vr(t + 2), r - 2, vr(t + 1)))
        E.op("v_and_b32 %s, %s, %s" % (vr(t + 2), sr(s_t0), vr(t + 2)))
        E.op("v_cmp_ne_u32 vcc, 0, %s" % vr(t + 2))
        E.op("v_cndmask_b32 %s, 0, %s, vcc" % (vr(BP + r), vr(t + 3)))
        E.op("v_subrev_u32 %s, %d, %s" % (vr(t + 2), r, vr(t + 1)))
        E.op("v_and_b32 %s, %s, %s" % (vr(t + 2), sr(s_t0), vr(t + 2)))
        E.op("v_cmp_ne_u32 vcc, 0, %s" % vr(t + 2))
        E.op("v_cndmask_b32 %s, 0, %s, vcc" % (vr(BO + r), vr(t + 3)))
    E.op("s_cmp_eq_u32 %s, 0" % sr(s_OW))
    E.op("s_cselect_b32 %s, %s, 0" % (sr(s_t0), f32hex(-1.0e30)))
    for r in range(4):
        E.op("v_min_f32 %s, %s, %s" % (vr(BF + r), sr(s_t0), vr(BP + r)))


def masks2(E):
    t = T0
    E.op("v_and_b32 %s, 1, v1" % vr(t))
    E.op("v_lshlrev_b32 %s, 4, %s" % (vr(t), vr(t)))
    E.op("v_mov_b32 %s, 0x0c0c0100" % vr(t + 1))
    E.op("v_alignbit_b32 %s, %s, %s, %s" % (vr(SEL[0]), vr(t + 1), vr(t + 1), vr(t)))
    E.op("v_mov_b32 %s, 0x0c0c0302" % vr(t + 1))
    E.op("v_alignbit_b32 %s, %s, %s, %s" % (vr(SEL[1]), vr(t + 1), vr(t + 1), vr(t)))
    SC = 32 ** -0.5 * 1.4426950408889634
    for f in range(2):
        E.op("v_mul_f32 %s, %s, %s" % (vr(RQ + 2 * f), f32hex(SC), vr(RC + f)))
    E.op("s_lshl_b32 %s, %s, 12" % (sr(s_t0), sr(s_c)))
    E.op("s_add_u32 %s, %s, %s" % (sr(s_t0), sr(s_t0), sr(s_OW)))
    E.op("s_add_u32 %s, %s, 0x%x" % (sr(s_x), sr(s_t0), WS_O))


def attention(E, St):
    UN = [(f, hd) for f in range(2) for hd in range(2)]
    Qf = [WF + 4 * u for u in range(4)]
    Pf = [WF + 16 + 4 * u for u in range(4)]
    mx = [WF + 32 + 2 * u for u in range(4)]
    ones = RT
    Sx = [AC[1] + 8 * u for u in range(4)]
    Ot = [AC[0] + 8 * u for u in range(4)]
    LO = " op_sel_hi:[1,0]"

    def dma(n):
        for _ in range(n):
            if St.dq:
                ops, tag, o, c = St.dq.pop(0)
                for t in ops:
                    E.op(t, tag=tag)
                St.m0_busy = not c
    poll8_issue(E, 128 * 128, "h0b", 1)
    for u, (f, hd) in enumerate(UN):
        a = acc_reg(0, f, 2 * hd)
        for i in range(0, 8, 2):
            E.op("v_pk_mul_f32 %s, %s, %s%s" % (vr(a + i, 2), vr(a + i, 2), vr(RQ + 2 * f, 2), LO))
    dma(1)
    for u, (f, hd) in enumerate(UN):
        a = acc_reg(0, f, 2 * hd)
        for i in range(4):
            E.op("v_cvt_pk_bf16_f32 %s, %s, %s" % (vr(Qf[u] + i), vr(a + 2 * i), vr(a + 2 * i + 1)))
        if u:
            f1, h1 = UN[u - 1]
            E.op("v_mfma_f32_16x16x32_bf16 %s, %s, %s, %s" % (vr(Sx[u - 1] + 4, 4), vr(kf(f1, h1), 4), vr(Qf[u - 1], 4), vr(BO, 4)))
            E.op("v_mfma_f32_16x16x32_bf16 %s, %s, %s, %s" % (vr(Sx[u - 1], 4), vr(KP + 4 * h1 if f1 == 0 else kf(0, h1), 4), vr(Qf[u - 1], 4),
                                                             vr(BF if f1 == 0 else BP, 4)))
    dma(1)
    E.op("v_mfma_f32_16x16x32_bf16 %s, %s, %s, %s" % (vr(Sx[3] + 4, 4), vr(kf(1, 1), 4), vr(Qf[3], 4), vr(BO, 4)))
    E.op("v_mfma_f32_16x16x32_bf16 %s, %s, %s, %s" % (vr(Sx[3], 4), vr(kf(0, 1), 4), vr(Qf[3], 4), vr(BP, 4)))
    for u in range(4):
        s = Sx[u]
        for i in range(4):
            E.op("v_max_f32 %s, %s, %s" % (vr(s + i), vr(s + 2 * i), vr(s + 2 * i + 1)))
        E.op("v_max3_f32 %s, %s, %s, %s" % (vr(mx[u]), vr(s), vr(s + 1), vr(s + 2)))
        E.op("v_max_f32 %s, %s, %s" % (vr(mx[u]), vr(mx[u]), vr(s + 3)))
    dma(1)
    E.op("v_permlane32_swap_b32 %s, %s" % (vr(mx[0]), vr(mx[1])))
    E.op("v_permlane32_swap_b32 %s, %s" % (vr(mx[2]), vr(mx[3])))
    E.op("v_max_f32 %s, %s, %s" % (vr(mx[0]), vr(mx[0]), vr(mx[1])))
    E.op("v_max_f32 %s, %s, %s" % (vr(mx[2]), vr(mx[2]), vr(mx[3])))
    E.op("v_permlane16_swap_b32 %s, %s" % (vr(mx[0]), vr(mx[2])))
    E.op("v_max_f32 %s, %s, %s" % (vr(mx[0]), vr(mx[0]), vr(mx[2])))
    E.op("v_mov_b32 %s, %s" % (vr(mx[2]), vr(mx[0])))
    E.op("v_permlane16_swap_b32 %s, %s" % (vr(mx[0]), vr(mx[2])))
    E.op("v_mov_b32 %s, %s" % (vr(mx[1]), vr(mx[0])))
    E.op("v_mov_b32 %s, %s" % (vr(mx[3]), vr(mx[2])))
    E.op("v_permlane32_swap_b32 %s, %s" % (vr(mx[0]), vr(mx[1])))
    E.op("v_permlane32_swap_b32 %s, %s" % (vr(mx[2]), vr(mx[3])))
    dma(1)
    for u in range(4):
        for x in (0, 2):
            E.op("v_pk_add_f32 %s, %s, %s%s neg_lo:[0,1] neg_hi:[0,1]" % (vr(Sx[u] + x, 2), vr(Sx[u] + x, 2), vr(mx[u], 2), LO))
    for u in range(4):
        for x in range(4):
            E.op("v_exp_f32 %s, %s" % (vr(Sx[u] + x), vr(Sx[u] + x)))
    E.wait_tag("hvf")
    for q in range(4):
        E.op("ds_read_b64 %s, %s offset:%d" % (vr(vp(q >> 1, q & 1), 2), vr(vXR8), 2048 + 512 * q))
    dma(9)
    for u in (2, 3, 0, 1):
        f, hd = UN[u]
        s = Sx[u]
        for h in range(2):
            E.op("v_cvt_pk_bf16_f32 %s, %s, %s" % (vr(s + 2 * h), vr(s + 2 * h), vr(s + 2 * h + 1)))
        for h in range(2):
            for i in range(2):
                E.op("v_perm_b32 %s, %s, %s, %s" % (vr(Pf[u] + 2 * h + i), vr(s + 2 * h), vr(s + 2 * h), vr(SEL[i])))
    for u in (2, 3, 0, 1):
        f, hd = UN[u]
        E.op("v_mfma_f32_16x16x32_bf16 %s, %s, %s, 0" % (vr(Sx[u] + 4, 4), vr(ones, 4), vr(Pf[u], 4)))
        for tau in range(2):
            E.op("v_mfma_f32_16x16x32_bf16 %s, %s, %s, 0" % (vr(Ot[u] + 4 * tau, 4), vr(vp(hd, tau) + 2 * f, 4), vr(Pf[u], 4)))
    for u in (2, 3, 0, 1):
        E.op("v_rcp_f32 %s, %s" % (vr(mx[u]), vr(Sx[u] + 4)))
    for u in (2, 3, 0, 1):
        f, hd = UN[u]
        for x in range(0, 8, 2):
            E.op("v_pk_mul_f32 %s, %s, %s%s" % (vr(Ot[u] + x, 2), vr(Ot[u] + x, 2), vr(mx[u], 2), LO))
        for d in range(4):
            E.op("v_cvt_pk_bf16_f32 %s, %s, %s" % (vr(Qf[u] + d), vr(Ot[u] + 2 * d), vr(Ot[u] + 2 * d + 1)))
        E.op("buffer_store_dwordx4 %s, %s, %s, %s offen offset:%d sc1" % (vr(Qf[u], 4), vr(vL16), sr(sWS, 4), sr(s_x), 2048 * hd + 1024 * f), tag="o")


FFB = D * F * 2


def pfq(first, code, jobs, span=100, start=6):
    q = [Ex("at", first + 2)] + [X(*o) for o in code]
    if "nopf" in DBG:
        return q
    for i, o in enumerate(jobs):
        q += [Ex("at", first + start + i * span // max(1, len(jobs)))]
        q += [X(t, hol=t.startswith("buffer") and ("%s," % vr(vTF)) not in t) for t in o]
    return q


def tjob(x):
    if x[0] == "o":
        return touch(sWO, vPF, 2048, 0)
    if x[0] == "d":
        return touch(sW2, vPF, 2048, min(int(x[1]) * 2 * MB, 5 * MB))
    if x[0] == "e":
        return touch(sW2, vTH, 1024, int(x[1]) * MB)
    if x[0] == "h":
        return touch(sW1, vTH, 7168, 6144) + touch(sW3, vTH, 7168, 6144)[2:]
    if x[0] == "H":
        return ["s_and_b32 %s, %s, 1024" % (sr(s_pf), sr(s_bq)), "s_sub_u32 %s, 6144, %s" % (sr(s_pf), sr(s_pf))] + \
               ["buffer_load_dword %s, %s, %s, %s offen" % (vr(vJUNK), vr(vTF), sr(m, 4), sr(s_pf)) for m in (sW1, sW3)]
    if x[0] in "AB":
        return ["s_movk_i32 %s, %d" % (sr(s_pf), 2048 * int(x[1])),
                "buffer_load_dword %s, %s, %s, %s offen" % (vr(vJUNK), vr(vTF), sr(sW1 if x[0] == "A" else sW3, 4), sr(s_pf))]
    return touch(sW1 if x[0] == "a" else sW3, vPF, 7168, 2048 * int(x[1]))


def tjobs(key, default):
    out = []
    for ev in opt("T_" + key, default).split(","):
        if ev and "nopf" not in DBG:
            out.append([t for x in ev.split("+") for t in tjob(x)])
    return out


def chk(soff, imm, expect):
    return Ex("fn", lambda E: poll_check(E, soff, imm, expect), c=2)


def main(dst):
    E = Em()
    E.junk = {("v", vJUNK)}
    ix = build_stages()
    St = Stream(E, STAGES, WF, NFR, low=opt("LOW", 20), dma_gap=opt("DGAP", 6))
    E.age = opt("AGE", 6)
    fi = lambda n: St.first_item[ix[n]]
    if "stamp" in DBG:
        heads = {v: k for k, v in ix.items() if k not in ("U0", "G1", "U1", "G2")}
        St.stamp_fn = lambda si: stamp(E, "bar " + heads[si]) if si in heads else None
    if "fine" in DBG or "jit" in DBG:
        St.stamp_fn = lambda si: stamp(E, "bar " + STAGES[si].name)
    if "pre" in DBG:
        St.pre_fn = lambda si: stamp(E, "pre " + STAGES[si].name)
    if "wst" in DBG or "jit" in DBG:
        St.wst = lambda n: stamp(E, n)
    St.novm = "novm" in DBG
    St.maxrr = opt("MAXRR", 1)
    St.hard = opt("HARD", 16)
    St.drain = opt("DRAIN", 5)
    St.vm_gap, St.vm_burst = opt("VGAP", 4.5), opt("VBURST", 10)
    St.hol_len, St.hol_budget = opt("HOL", 130), opt("HOLB", 8)
    prologue(E)
    E.wait(lg=0)
    tq = lambda part: touch(sQKV, vPF, 6144, 2048 * part)
    C3 = opt("C3", 1)
    t3 = lambda part: ["s_movk_i32 %s, %d" % (sr(s_pf), 2048 * part),
                       "buffer_load_dword %s, %s, %s, %s offen" % (vr(vJUNK), vr(vA3), sr(sQKV, 4), sr(s_pf))] if C3 else []

    def after():
        table_loads(E, WS_P1, 8192, 0, 4096, WF)
        E.ops(sum(code_touch("R_mod", 2), []))
        E.ops(tq(1) + t3(1))

    def idle():
        masks(E)
        E.ops(pre_m((ix["M"] + 3) % 4) + pre_halo())
    vsum, vsq = x_stream(E, XRES, after, idle, lambda: table_build(E, WF, True))
    stamp(E, "x done")
    E.wait(lg=0)
    E.op("s_barrier")
    mod_prepare(E)
    St.issue_dma_now(0, 1)
    row_consts(E, vsum, vsq)
    stamp(E, "table1")
    E.loaded, E.mode, E.inplace = set(), "need", True
    E.label("R_mod")
    for n in range(2 * LAG):
        pv = mod_post(Dreg[(n - 2) % 4], n - 2) if n >= 2 else []
        for j, m in enumerate(mod_mfma(n)):
            E.op(m)
            E.ops(pv[2 * j:2 * j + 2])
            if j == 1 and n >= 2:
                E.op(mod_rd(n // 2 - 1 + NA)[n & 1])
        if n == 1:
            St.issue_dma_now(0, 1)
        if n in (5, 9):
            St.issue_dma_now(1, 1)
        if n == 11 and opt("KM", 0) == 2:
            E.ops(tq(2) + t3(2) + tq(0) + t3(0))
    if not STAGES[1].issued:
        St.issue_dma_now(1)
    St.queue_dma(2)
    St.preread(12)
    stamp(E, "mod1 done")
    qq = []
    for ks in range(LAG - 1, 32):
        qq += [Ex("at", 4 * (ks - LAG) + 4)]
        if ks + NA < 32:
            qq += singles(mod_rd(ks + NA))
        for n in (2 * ks, 2 * ks + 1):
            qq += singles(mod_post(Dreg[n % 4], n))
        qq += [Ex("by", min(4 * ks, 4 * (ks + 2 - LAG) + 3))]
    qq += singles(["ds_read_b128 %s, %s offset:%d" % (vr(AC[1] + 4 * ks, 4), vr(vCSR), 64 * ks) for ks in range(8)]) + [Ex("by", fi("M"))]
    KM = opt("KM", 0)
    jk = ([tq(2) + t3(2), tq(0) + t3(0)], [tq(2) + t3(2) + tq(0) + t3(0)], [])[KM] + tjobs("K", "o+a1")
    hl, St.hol_len = St.hol_len, opt("HOLK", 0)
    lw = (St.hard, St.low, St.dma_gap, St.fast_gap)
    St.hard, St.low, St.dma_gap, St.fast_gap = 10, 14, opt("KGAP", 8), opt("KFAST", 6)
    r = St.run(4 * (32 - LAG) - 4, [(pfq(0, code_touch("S_V"), jk, start=opt("TS_K", 20), span=opt("TP_K", 70)), None), (qq, None)],
               rd_limit=10 ** 9, flush=False, name="K", carry=True)
    St.hol_len = hl
    St.hard, St.low, St.dma_gap, St.fast_gap = lw
    St.run(fi("V"), [(r[0], None), (r[1], None)], rd_limit=10 ** 9, flush=False, name="K2")
    E.mode, E.inplace = None, False
    SA = opt("SAGE", 50)
    rt = ["v_mov_b32 %s, 0x3f80" % vr(T0), "v_mov_b32 %s, 0" % vr(T0 + 1), "v_mov_b32 %s, 0" % vr(T0 + 2)]
    rt2 = [X(*["v_mfma_f32_16x16x16_bf16 %s, %s, %s, 0" % (vr(KP + 4 * f, 4), vr(RT + 4 * f, 2), vr(T0, 2)) for f in range(2)]), Ex("delay", 4)]
    rt2 += singles(["v_rcp_f32 %s, %s" % (vr(RT + i), vr(KP + i)) for i in range(8)])
    qm = [Ex("delay", 4), X("buffer_store_dwordx4 %s, %s, %s, 0 offen sc1" % (vr(TX, 4), vr(vG2), sr(sWS, 4)), tag="g2"),
          Ex("sig", ("hk1", SA)), X(signal(s_oHS, 0, s_hsv)), Ex("wtag", "g2"), Ex("bar"), X(vsignal(vS2))]
    RM = Rec()
    masks2(RM)
    St.run(fi("Q"), [(pfq(fi("V"), code_touch("S_Q"), tjobs("V", "a0+b0"), start=opt("TS_V", 30), span=120), None), (qm, None), (k_final(), None),
                     (singles(rt) + rt2 + grouped(RM.l), fi("Q"))], rd_limit=10 ** 9, flush=False, name="V")
    qs = [Ex("sig", ("hv3", SA)), X(signal(s_oHS, 0, s_hsv))]
    qh = [Ex("bar"), Ex("bar"), X(*poll_issue(s_oHP)), Ex("bar"), chk(s_oHP, 0, sr(s_eH)), X(*halo_fetch(0), tag="hkf", m0=True),
          X("s_lshl_b32 %s, %s, 1" % (sr(s_eH), sr(s_eH))), Ex("at", fi("O") - opt("VPOLL", 26)), X(*poll_issue(s_oHP)),
          Ex("bar"), Ex("wtag", "hkf"), chk(s_oHP, 0, sr(s_eH)), X(*halo_fetch(2048), tag="hvf", m0=True)]
    qh += [X("ds_read_b128 %s, %s offset:%d" % (vr(KP + 4 * hd, 4), vr(vXR16), 1024 * hd)) for hd in range(2)]
    vf = v_final()
    if "q_nost" in DBG:
        vf = [e for e in vf if not (e.kind == "ops" and e.val[0].startswith("buffer_store"))]
    if "q_nods" in DBG:
        vf = [e for e in vf if not (e.kind == "ops" and e.val[0].startswith("ds_write"))]
    if "q_nofetch" in DBG:
        qh = [e for e in qh if not e.m0]
    if "q_nopoll" in DBG:
        qh = [e for e in qh if not (e.kind == "fn" or (e.kind == "ops" and "atomic" in e.val[-1]))]
    St.run(fi("O"), [(pfq(fi("Q"), code_touch("T_attn", 2), tjobs("Q", "h+e0"), start=opt("TS_Q", 6), span=opt("TP_Q", 160)), None), (qs, None), (qh, None), (vf, None)], flush=False, name="Q")
    assert STAGES[ix["O"]].barred
    E.label("T_attn")
    stamp(E, "Q done")
    attention(E, St)
    stamp(E, "attn done")
    rest(E, St, ix, fi)
    finish(E)
    write(E, dst)


X1K = U
NL2R, VAR = RT, RT + 2


def g_final(aset, elems):
    q = []
    tmp = CM
    for b in range(0, len(elems), 4):
        grp = elems[b:b + 4]
        e = [tmp + (b % 8) + i for i in range(4)]
        q += ["v_mul_f32 %s, %s, %s" % (vr(e[i]), vr(NL2R + f), vr(a)) for i, (f, a) in enumerate(grp)]
        q += ["v_exp_f32 %s, %s" % (vr(e[i]), vr(e[i])) for i in range(4)]
        q += ["v_fma_f32 %s, %s, %s, %s" % (vr(e[i]), vr(e[i]), vr(VAR + f), vr(VAR + f)) for i, (f, a) in enumerate(grp)]
        q += ["v_rcp_f32 %s, %s" % (vr(e[i]), vr(e[i])) for i in range(4)]
        q += ["v_mul_f32 %s, %s, %s" % (vr(a), vr(a), vr(e[i])) for i, (f, a) in enumerate(grp)]
    return singles(q)


def g_elems(aset, ts=(0, 1, 2, 3)):
    return [(f, acc_reg(aset, f, t) + r) for f in range(2) for t in ts for r in range(4)]


def pack8(a):
    return ["v_cvt_pk_bf16_f32 %s, %s, %s" % (vr(a + i), vr(a + 2 * i), vr(a + 2 * i + 1)) for i in range(4)]


def u_final(gset, j, tag):
    q = [X("s_lshl_b32 %s, %s, 5" % (sr(s_pt), sr(SBF[j]))), X("s_add_u32 %s, %s, %s" % (sr(s_pt), sr(s_pt), sr(s_hb)))]
    for f in range(2):
        for u in range(2):
            a, g = acc_reg(2, f, 2 * u), acc_reg(gset, f, 2 * u)
            q += singles(["v_mul_f32 %s, %s, %s" % (vr(a + i), vr(a + i), vr(g + i)) for i in range(8)] + pack8(a))
            q.append(X("buffer_store_dwordx4 %s, %s, %s, %s offen offset:%d sc1" % (vr(a, 4), vr(vL16), sr(sWS, 4), sr(s_pt), 2048 * u + 1024 * f),
                       tag=tag if f + u == 2 else None))
    return q


def h_final(tag):
    q = g_final(4, g_elems(4, (0, 1)))
    for f in range(2):
        a, g = acc_reg(4, f, 2), acc_reg(4, f, 0)
        q += singles(["v_mul_f32 %s, %s, %s" % (vr(a + i), vr(a + i), vr(g + i)) for i in range(8)] + pack8(a))
        q.append(X("buffer_store_dwordx4 %s, %s, %s, %s offen offset:%d sc1" % (vr(a, 4), vr(vL16), sr(sWS, 4), sr(s_hh), 1024 * f), tag=tag))
    return q


def hh_loads(slot):
    s_x = 19 if slot >= 20 else G.s_x
    row, half = DGRP[slot // 4]
    ks = (0 if half else row // 32) + slot % 4
    q = []
    if slot % 2 == 0:
        q.append(X("s_add_u32 %s, %s, %d" % (sr(s_x), sr(s_hx2 if half else s_hx), 2048 * ks)))
    return q + [X("buffer_load_dwordx4 %s, %s, %s, %s offen offset:%d sc1" % (XR(slot, f), vr(vL16), sr(sWS, 4), sr(s_x), 2048 * (slot % 2) + 1024 * f))
                for f in range(2)]


def d_final(src, j):
    q = []
    for k in range(4):
        q += singles(pack8(src + 8 * k))
        q.append(X("buffer_store_dwordx4 %s, %s, %s, %s offen offset:%d sc1" % (vr(src + 8 * k, 4), vr(vL16), sr(sWS, 4), sr(8 + j), 1024 * k), tag="p%d" % j))
    return q


s_oH = 24


def late_consts():
    R = Rec()
    s_kq, s_cg = 12, 13
    R.op("s_and_b32 %s, %s, 12" % (sr(s_t1), sr(s_c)))
    for j in (1, 2):
        R.op("s_add_u32 %s, %s, %d" % (sr(s_t0), sr(s_c), j))
        R.op("s_and_b32 %s, %s, 3" % (sr(s_t0), sr(s_t0)))
        R.op("s_add_u32 %s, %s, %s" % (sr(s_t0), sr(s_t0), sr(s_t1)))
        R.op("s_lshl_b32 %s, %s, 7" % (sr(s_t0), sr(s_t0)))
        R.op("s_add_u32 %s, %s, %d" % (sr(SBF[j]), sr(s_t0), 2048 * j))
    R.op("s_lshr_b32 %s, %s, 2" % (sr(s_kq), sr(s_c)))
    R.op("s_and_b32 %s, %s, 3" % (sr(s_cg), sr(s_c)))
    R.op("s_add_u32 %s, %s, 0x%x" % (sr(s_hb), sr(s_HW), WS_HH))
    R.op("s_lshl_b32 %s, %s, 5" % (sr(s_hh), sr(s_bh)))
    R.op("s_add_u32 %s, %s, %s" % (sr(s_hh), sr(s_hh), sr(s_hb)))
    R.op("s_lshl_b32 %s, %s, 14" % (sr(s_hx), sr(s_kq)))
    R.op("s_add_u32 %s, %s, %s" % (sr(s_hx), sr(s_hx), sr(s_hb)))
    R.op("s_lshl_b32 %s, %s, 13" % (sr(s_hx2), sr(s_kq)))
    R.op("s_add_u32 %s, %s, %s" % (sr(s_hx2), sr(s_hx2), sr(s_hb)))
    R.op("s_add_u32 %s, %s, %d" % (sr(s_hx2), sr(s_hx2), 96 * 2048))
    R.op("s_lshl_b32 s14, %s, 18" % sr(s_kq))
    for i in range(4):
        R.op("v_add_u32 %s, s14, %s" % (vr(vDd + i), vr(vD2 + i)))
    R.op("s_lshl_b32 %s, %s, 9" % (sr(s_t0), sr(s_cg)))
    R.op("s_add_u32 s14, s14, %s" % sr(s_t0))
    R.op("s_lshr_b32 s15, %s, 12" % sr(s_OW))
    R.op("s_lshl_b32 s17, %s, 14" % sr(s_rb))
    R.op("s_lshl_b32 %s, %s, 7" % (sr(s_t0), sr(s_w)))
    R.op("s_add_u32 s17, s17, %d" % (WS_CNT + 256 * 128))
    R.op("s_add_u32 s18, s17, %s" % sr(s_t0))
    for j in range(4):
        R.op("s_add_u32 %s, %s, %d" % (sr(s_t1), sr(s_kq), j + 1))
        R.op("s_and_b32 %s, %s, 3" % (sr(s_t1), sr(s_t1)))
        R.op("s_lshl_b32 %s, %s, 7" % (sr(s_t0), sr(s_t1)))
        R.op("s_add_u32 %s, s14, %s" % (sr(s_bd4 + j), sr(s_t0)))
        R.op("s_lshl_b32 %s, %s, 2" % (sr(s_t1), sr(s_t1)))
        R.op("s_add_u32 s16, %s, %s" % (sr(s_t1), sr(s_cg)))
        R.op("s_add_u32 %s, s15, s16" % sr(s_t0))
        R.op("s_mul_i32 %s, %s, 12288" % (sr(s_t0), sr(s_t0)))
        R.op("s_add_u32 %s, %s, 0x%x" % (sr(8 + j), sr(s_t0), WS_PART + (4096 * j if j < 3 else 0)))
        R.op("s_lshl_b32 s16, s16, 10")
        R.op("s_add_u32 %s, s16, s18" % sr(20 + j))
    R.op("s_and_b32 %s, %s, 12" % (sr(s_t1), sr(s_c)))
    R.op("s_add_u32 %s, %s, %s" % (sr(s_t1), sr(s_t1), sr(s_w)))
    R.op("s_lshl_b32 %s, %s, 10" % (sr(s_t1), sr(s_t1)))
    R.op("s_add_u32 %s, %s, s17" % (sr(s_oH), sr(s_t1)))
    return R.l


def rest(E, St, ix, fi):
    t = T0
    BIG = 10 ** 9
    poll8_check(E, 128 * 128, "h0b", 1)
    NOB = opt("NOB", 1)
    if NOB:
        assert not St.dq
        E.wait_tag("W%d" % (ix["O"] + 3))
        for q in range(1, 4):
            STAGES[ix["O"] + q].barred = True
    E.op("s_barrier")
    TR = AC[1]
    table_loads(E, WS_P2, 16384, 4096, 8192, TR)
    gl = AC[2]
    E.op("s_lshl_b32 %s, %s, 8" % (sr(s_t0), sr(s_cw)))
    E.op("v_and_b32 %s, 15, v1" % vr(t + 5))
    E.op("v_lshl_add_u32 %s, %s, 4, %s" % (vr(t + 5), vr(t + 5), sr(s_t0)))
    E.op("v_bfe_u32 %s, v1, 4, 1" % vr(t + 4))
    E.op("v_mul_u32_u24 %s, 12288, %s" % (vr(t + 4), vr(t + 4)))
    E.op("v_add_u32 %s, %s, %s" % (vr(t + 5), vr(t + 5), vr(t + 4)))
    for k in range(4):
        E.op("s_mov_b32 %s, 0x%x" % (sr(s_t0), WS_P2 + 16384 * k))
        E.op("buffer_load_dwordx4 %s, %s, %s, %s offen sc1" % (vr(gl + 4 * k, 4), vr(t + 5), sr(sWS, 4), sr(s_t0)))
    St.preread(16)
    E.wait_tag("o")
    stamp(E, "o acked")
    E.ops(poll_issue(s_oT, val=1))
    if opt("SELF", 0):
        for q in range(2):
            E.op("buffer_load_dword %s, %s, %s, %s offen offset:%d sc1" % (vr(vJUNK), vr(vPF), sr(sWS, 4), sr(s_x), 2048 * q))
    poll_check(E, s_oT, 0, "16", first="15")
    stamp(E, "o seen")
    NX0 = opt("NX0", 14)
    E.loaded, E.mode = set(), "need"
    lx = load_x(E, WS_O, 0, 64)
    for ops in lx[:NX0]:
        E.ops(ops)
    GA = AC[2]
    XF = AC[1]
    R = Rec()
    table_build(R, TR, False, U)
    for x in (0, 2):
        R.op("v_pk_add_f32 %s, %s, %s" % (vr(gl + x, 2), vr(gl + x, 2), vr(gl + 4 + x, 2)))
        R.op("v_pk_add_f32 %s, %s, %s" % (vr(gl + 8 + x, 2), vr(gl + 8 + x, 2), vr(gl + 12 + x, 2)))
    for x in (0, 2):
        R.op("v_pk_add_f32 %s, %s, %s" % (vr(gl + x, 2), vr(gl + x, 2), vr(gl + 8 + x, 2)))
    for x in (0, 2):
        R.op("v_cvt_pk_bf16_f32 %s, %s, %s" % (vr(gl + 4 + x), vr(gl + x), vr(gl + x + 1)))
    for x in (0, 2):
        R.op("v_lshlrev_b32 %s, 16, %s" % (vr(gl + x), vr(gl + 4 + x)))
        R.op("v_and_b32 %s, 0xffff0000, %s" % (vr(gl + x + 1), vr(gl + 4 + x)))
    R.op("v_and_b32 %s, 0x1f0, %s" % (vr(t + 5), vr(vL16)))
    R.op("v_add_u32 %s, %d, %s" % (vr(t + 5), GT, vr(t + 5)))
    R.op("ds_write_b128 %s, %s" % (vr(t + 5), vr(gl, 4)))
    R.op("v_and_b32 %s, 48, v1" % vr(vA3))
    R.op("v_add_u32 %s, %d, %s" % (vr(vA3), GT, vr(vA3)))
    NPRE = opt("NPRE", 60)
    E.ops(R.l[:NPRE])
    qt = R.l[NPRE:]
    qt2 = ["ds_read_b128 %s, %s offset:%d" % (vr(GA + 4 * q, 4), vr(vA3), 64 * q) for q in range(4)]
    for f in range(2):
        for d in range(8):
            qt2.append("v_lshlrev_b32 %s, 16, %s" % (vr(XF + 16 * f + 2 * d), vr(XRES[f] + d)))
            qt2.append("v_and_b32 %s, 0xffff0000, %s" % (vr(XF + 16 * f + 2 * d + 1), vr(XRES[f] + d)))
    g0 = ix["G0"]
    for q in range(4):
        STAGES[g0 + q].hold = True
    qo = []
    for n in range(NX0, 64):
        qo += [Ex("at", fi("O") + 2 * (n - NX0) + 1), X(*lx[n])]
    qo += [X(*o) for o in code_touch("T_wo", 2) + tjobs("O", "")]
    ones, vsum, vsq, vst = AC[2] + 16, [AC[2] + 20, AC[2] + 24], [AC[2] + 28, TX], CM
    s_dm = 4
    qe = ["v_mov_b32 %s, 0x3f803f80" % vr(ones + i) for i in range(4)]
    qe += ["v_and_b32 %s, 3, v1" % vr(t)]
    qe += ["v_cmp_eq_u32 %s, %d, %s" % (sr(s_dm + 2 * r - 2, 2), r, vr(t)) for r in range(1, 4)]
    qe += ["s_lshl_b32 %s, %s, 6" % (sr(s_bh), sr(s_c)),
           "s_add_u32 %s, %s, 6144" % (sr(s_bh), sr(s_bh)),
           "s_lshl_b32 %s, %s, 12" % (sr(s_t0), sr(s_cw)),
           "s_add_u32 %s, %s, %s" % (sr(s_t0), sr(s_t0), sr(s_OW)),
           "s_add_u32 s27, %s, 0x%x" % (sr(s_t0), WS_X1),
           "s_lshr_b32 %s, %s, 4" % (sr(s_t0), sr(s_t0)),
           "s_add_u32 %s, %s, 0x%x" % (sr(s_t0), sr(s_t0), WS_ST),
           "s_lshr_b32 s11, %s, 4" % sr(s_OW),
           "s_add_u32 s11, s11, 0x%x" % WS_ST,
           "v_and_b32 %s, 15, v1" % vr(t),
           "v_lshl_add_u32 %s, %s, 4, %s" % (vr(t + 1), vr(t), sr(s_t0)),
           "v_lshrrev_b32 %s, 4, v1" % vr(t + 3),
           "v_lshlrev_b32 %s, 4, %s" % (vr(vA2), vr(t)),
           "v_lshl_add_u32 %s, %s, 10, %s" % (vr(vA2), vr(t + 3), vr(vA2)),
           "v_lshrrev_b32 %s, 2, %s" % (vr(t + 2), vr(t)),
           "v_mov_b32 %s, %s" % (vr(t), sr(s_oob)),
           "v_cmp_eq_u32 vcc, %s, %s" % (vr(t + 2), vr(t + 3)),
           "v_cndmask_b32 %s, %s, %s, vcc" % (vr(vSP), vr(t), vr(t + 1))]
    RF = Rec()
    ff_addrs(RF)
    qe += RF.l
    St.vm_gap, vg = 0, St.vm_gap
    St.run(fi("G0"), [(qo, None), (singles(qt) + ([] if NOB else [Ex("bar")]) + singles(qt2) + grouped(qe), fi("G0") - 4)], open_next=False, name="O")
    St.vm_gap = vg
    E.label("T_wo")
    stamp(E, "O done")
    for f in range(2):
        for u in range(2):
            a = acc_reg(0, f, 2 * u)
            xf = XF + 16 * f + 8 * u
            for i in range(0, 8, 2):
                E.op("v_pk_fma_f32 %s, %s, %s, %s" % (vr(xf + i, 2), vr(a + i, 2), vr(GA + 8 * u + i, 2), vr(xf + i, 2)))
    for f in range(2):
        for u in range(2):
            xf = XF + 16 * f + 8 * u
            d = X1K + 8 * f + 4 * u
            for i in range(4):
                E.op("v_cvt_pk_bf16_f32 %s, %s, %s" % (vr(d + i), vr(xf + 2 * i), vr(xf + 2 * i + 1)))
            E.op("buffer_store_dwordx4 %s, %s, %s, s27 offen offset:%d sc1" % (vr(d, 4), vr(vL16), sr(sWS, 4), 2048 * u + 1024 * f))
            E.op("v_mfma_f32_16x16x32_bf16 %s, %s, %s, %s" % (vr(vsq[f], 4), vr(d, 4), vr(d, 4), vr(vsq[f], 4) if u else "0"))
            E.op("v_mfma_f32_16x16x32_bf16 %s, %s, %s, %s" % (vr(vsum[f], 4), vr(ones, 4), vr(d, 4), vr(vsum[f], 4) if u else "0"))
    for f in range(2):
        E.op("v_cndmask_b32 %s, %s, %s, %s" % (vr(vst + 2 * f + 1), vr(vsq[f]), vr(vsq[f] + 1), sr(s_dm, 2)))
        for r in (2, 3):
            E.op("v_cndmask_b32 %s, %s, %s, %s" % (vr(vst + 2 * f + 1), vr(vst + 2 * f + 1), vr(vsq[f] + r), sr(s_dm + 2 * r - 2, 2)))
        E.op("v_mov_b32 %s, %s" % (vr(vst + 2 * f), vr(vsum[f])))
    E.op("buffer_store_dwordx4 %s, %s, %s, 0 offen sc1" % (vr(vst, 4), vr(vSP), sr(sWS, 4)), tag="x1")
    if NOB:
        E.wait(lg=0)
        E.op("s_barrier")
    St.issue_dma_now(g0)
    mod2_prepare(E)
    E.op("s_mov_b32 %s, s11" % sr(s_pf))
    lc = late_consts()
    E.ops(lc[:opt("LC1", 30)])
    E.wait_tag("x1")
    stamp(E, "x1 acked")
    E.ops(poll_issue(s_oT, 4096, val=1))
    St.issue_dma_now(g0 + 1)
    E.ops(sum(code_touch("S_G0", 2), []))
    E.ops(lc[opt("LC1", 30):])
    for q in (2, 3):
        STAGES[g0 + q].hold = False
    St.queue_dma(g0 + 2)
    St.preread(12)
    poll_check(E, s_oT, 4096, "16", first="15")
    stamp(E, "x1 seen")
    sl = AC[0]
    for j in range(4):
        E.op("buffer_load_dwordx4 %s, %s, %s, %s offen offset:%d sc1" % (vr(sl + 4 * j, 4), vr(vA2), sr(sWS, 4), sr(s_pf), 256 * j))
    for n in range(2 * NR):
        E.ops(raw_load(WS_X1, n))
    for x in (0, 2):
        E.op("v_pk_add_f32 %s, %s, %s" % (vr(sl + x, 2), vr(sl + x, 2), vr(sl + 4 + x, 2)))
        E.op("v_pk_add_f32 %s, %s, %s" % (vr(sl + 8 + x, 2), vr(sl + 8 + x, 2), vr(sl + 12 + x, 2)))
    for x in (0, 2):
        E.op("v_pk_add_f32 %s, %s, %s" % (vr(sl + x, 2), vr(sl + x, 2), vr(sl + 8 + x, 2)))
    xgroup_reduce_n(E, [sl + i for i in range(4)], [sl + 4 + i for i in range(4)], "v_add_f32")
    for i in range(4):
        E.op("v_mul_f32 %s, %s, %s" % (vr(sl + i), f32hex(1.0 / 1024), vr(sl + i)))
    for f in range(2):
        E.op("v_mul_f32 %s, %s, %s" % (vr(sl + 4 + f), vr(sl + 2 * f), vr(sl + 2 * f)))
    finish_consts(E, [sl, sl + 2], [sl + 1, sl + 3], [sl + 4, sl + 5], [sl + 6, sl + 7], cm=False)
    for j in range(NR + 1):
        for f in range(2):
            E.op("v_mov_b32 %s, %s" % (vr(RAW[f] + 6 * j), vr(sl + 6 + f)))
    stamp(E, "consts")
    E.loaded, E.mode = set(), "need"
    for n in range(2 * LAG2):
        E.ops(mod2_mfma(n))
        for o in mod2_after(WS_X1, n):
            E.ops(o)
        if n == 0:
            for f in range(2):
                E.op("v_mul_f32 %s, 0xbfb8aa3b, %s" % (vr(NL2R + f), vr(RC + f)))
                E.op("v_mul_f32 %s, %s, %s" % (vr(VAR + f), vr(TX + f), vr(TX + f)))
        else:
            E.ops(mod_post(M2D[(n - 1) % 3], n - 1))
    stamp(E, "mod2 head")
    gi = fi("G0")
    it = lambda n: gi + 2 * (n - 2 * LAG2) + 1
    qa, qb = [], []
    for n in range(2 * LAG2 - 1, 64):
        if n >= 2 * LAG2:
            qa += [Ex("at", it(n) + 1)] + [X(*o) for o in mod2_after(WS_X1, n)] + [Ex("by", it(n) + 3)]
        qb += [Ex("at", it(n) + 2)] + singles(mod_post(M2D[n % 3], n)) + [Ex("by", min(it(n + 3), gi + 4 * (n // 2)))]
    lw = (St.hard, St.low, St.dma_gap, St.fast_gap, St.budget, St.vm_gap)
    St.hard, St.low, St.dma_gap, St.fast_gap, St.budget, St.vm_gap = 10, 14, opt("GGAP", 12), opt("GFAST", 10), 3, 0
    E.agev = 30
    r = St.run(it(63) + 1, [(qa, None), (pfq(gi, code_touch("S_H0"), tjobs("G0", ""), start=opt("TS_G", 30), span=opt("TP_G", 120)), None), (qb, None)],
               rd_limit=BIG, flush=False, name="G0", carry=True)
    E.agev = 0
    St.hard, St.low, St.dma_gap, St.fast_gap, St.budget, St.vm_gap = lw
    St.run(fi("H0"), [(q, None) for q in r], rd_limit=BIG, flush=False, name="G0b")
    E.mode = None
    dl = Ex("delay", 3)
    pq = lambda a, b, jobs=[], n=1: (pfq(fi(a), code_touch("S_" + b, n), jobs, start=opt("TS", 4), span=120), None)
    run = lambda a, b, qs, **kw: St.run(fi(b), qs, rd_limit=BIG, flush=False, name=a, **kw)
    _, c = run("H0", "H1", [pq("H0", "H1", tjobs("U0", "b1+e1+e2")), ([dl] + g_final(0, g_elems(0)), None)], carry=True)
    run("H1", "H2", [pq("H1", "H2", tjobs("G1", "a2+e3+e4")), (c + [dl] + u_final(0, 0, "h0"), fi("H2"))])
    _, c = run("H2", "H3", [pq("H2", "H3", tjobs("U1", "b2+e5+e6")), ([dl] + g_final(1, g_elems(1)), None)], carry=True)
    run("H3", "U2", [pq("H3", "U2", tjobs("G2", "")),
                     (c + [dl] + u_final(1, 1, "h1") + [Ex("at", fi("G2") + 2)] + h_final("h2"), fi("U2") - 8),
                     ([Ex("sig", ("h1", 60)), X(signal(s_oH, 772))], None)])
    NU = opt("NU", 10)
    qx = [X(*poll_issue(s_oH, 772)), Ex("bar"), chk(s_oH, 772, "4"), Ex("wtag", "h2"), X(signal(s_oH, 768))]
    for sl_ in range(NU):
        qx += [Ex("at", fi("U2") + 28 + (92 // NU) * sl_)] + hh_loads(sl_)
    E.loaded, E.mode = set(), "avoid"
    _, _, c = run("U2", "DA", [pq("U2", "DA", n=1 if opt("CT", 0) else 2), (qx, fi("DA")), ([dl] + g_final(0, g_elems(0)), None)], carry=True)
    E.mode = "need"
    E.agev = opt("AGEV", 50)
    da = fi("DA")
    need = lambda g: da + 16 * min(i for i, e in enumerate(DORD) if e[1] == g)
    done = lambda j: da + 16 * (1 + max(i for i, e in enumerate(DORD) if e[0] == j))
    qy = [X(*poll_issue(s_oH, 768))]
    for sl_ in range(NU, 20):
        if sl_ == 16:
            qy += [Ex("at", da + 30), chk(s_oH, 768, "4")]
        qy += [Ex("at", da + opt("XSTEP", 9) * (sl_ - NU))] + hh_loads(sl_)
    ql = c + [dl] + u_final(0, 2, "h3")
    HDL = need(5) - da - opt("HBACK", 100)
    ql2 = [Ex("sig", ("h3", opt("H3AGE", 44))), X(signal(s_oH, 896)), Ex("delay", opt("H3P", 26)), Ex("sig", ("h3", 0)), X(*poll_issue(s_oH, 896)),
           Ex("bar"), chk(s_oH, 896, "4")]
    for sl_ in range(20, 28):
        ql2 += hh_loads(sl_)
    d3 = da + 21 * 16
    GB, ID = RT, CM + 8
    qf = [Ex("at", da + HDL + 2)]
    qf += [X("ds_read_b128 %s, %s offset:%d" % (vr(GB + 4 * q, 4), vr(vA3), 256 + 64 * q)) for q in range(4)]
    qf += grouped(["v_and_b32 %s, 15, v1" % vr(t),
                   "v_lshrrev_b32 %s, 2, %s" % (vr(t + 1), vr(t)),
                   "v_lshrrev_b32 %s, 4, v1" % vr(t + 2),
                   "v_and_b32 %s, 1, v1" % vr(t + 3),
                   "v_lshlrev_b32 %s, 4, %s" % (vr(t + 3), vr(t + 3)),
                   "v_mov_b32 %s, 0x3f80" % vr(t + 4),
                   "v_lshlrev_b32 %s, %s, %s" % (vr(t + 3), vr(t + 3), vr(t + 4)),
                   "v_cmp_eq_u32 vcc, %s, %s" % (vr(t + 1), vr(t + 2)),
                   "v_cndmask_b32 %s, 0, %s, vcc" % (vr(t + 3), vr(t + 3)),
                   "v_and_b32 %s, 2, v1" % vr(t + 4),
                   "v_cmp_eq_u32 vcc, 0, %s" % vr(t + 4),
                   "v_cndmask_b32 %s, 0, %s, vcc" % (vr(ID), vr(t + 3)),
                   "v_sub_u32 %s, %s, %s" % (vr(ID + 1), vr(t + 3), vr(ID)),
                   "v_lshlrev_b32 %s, 11, %s" % (vr(t), vr(t)),
                   "v_bfe_u32 %s, v1, 4, 1" % vr(t + 1),
                   "v_lshl_add_u32 %s, %s, 5, %s" % (vr(t), vr(t + 1), vr(t)),
                   "v_bfe_u32 %s, v1, 5, 1" % vr(t + 1),
                   "v_lshl_add_u32 %s, %s, 4, %s" % (vr(t), vr(t + 1), vr(t)),
                   "s_add_u32 s12, %s, %s" % (sr(s_OW), sr(s_bo)),
                   "s_add_u32 s13, s12, 32768",
                   "s_add_u32 s14, s11, 4096",
                   "s_add_u32 s15, s11, 8192"])
    up = AC[2]
    for f in range(2):
        for u in range(2):
            qf.append(X("buffer_load_dwordx4 %s, %s, %s, s27 offen offset:%d sc1" % (vr(AC[0] + 8 * f + 4 * u, 4), vr(vL16), sr(sWS, 4), 2048 * u + 1024 * f)))
    qf.append(Ex("delay", 60))
    for q in range(4):
        for d in range(4):
            qf += singles(["v_lshlrev_b32 %s, 16, %s" % (vr(up + 8 * q + 2 * d), vr(AC[0] + 4 * q + d)),
                           "v_and_b32 %s, 0xffff0000, %s" % (vr(up + 8 * q + 2 * d + 1), vr(AC[0] + 4 * q + d))])
    qd = [Ex("at", done(0) + 2)] + d_final(AC[1], 0) + [Ex("at", done(1) + 2)]
    for k in range(4):
        qd += singles(["v_accvgpr_read_b32 %s, %s" % (vr(AC[1] + 8 * k + i), ar(224 + 8 * k + i)) for i in range(8)]) + d_final(AC[1], 1)[5 * k:5 * k + 5]
    qc = []
    if opt("CT", 0):
        for i in (60, 180, 290):
            qc += [Ex("at", da + i)] + [X(*o) for o in code_touch("S_DA", 1, (43 * i + 3000) // 128 * 128)]
    else:
        qc = [Ex("at", da + 150)] + [X(*o) for o in code_touch("S_D3")]
    St.run(d3, [(qc, None), (qy, None), (ql2, None), (ql, da + HDL), (qd, d3), (qf, d3)],
           rd_limit=BIG, flush=False, name="DA")
    if St.stamp_fn:
        stamp(E, "D3 start")
    end = len(St.items)

    def padd(reg, k):
        return ["v_mfma_f32_16x16x16_bf16 %s, %s, %s, %s" % (vr(AC[0] + 8 * k + 4 * h, 4), vr(ID, 2), reg(2 * h), vr(AC[0] + 8 * k + 4 * h, 4)) for h in range(2)]
    q2 = [dl] + d_final(AC[4], 2)
    PR = [lambda k: ar(224 + 4 * k, 4), lambda k: ar(240 + 4 * k, 4), lambda k: vr(AC[1] + 4 * k, 4)]
    pl = lambda j, k: X("buffer_load_dwordx4 %s, %s, %s, %s offen offset:%d sc1" % (PR[j](k), vr(vL16), sr(sWS, 4), ("s11", "s14", "s15")[j], 1024 * k))
    q3 = [Ex("at", d3 + opt("P1AT", 2)), Ex("wtag", "p1"), X(signal(20, 128)), X(signal(21, 128)),
          Ex("at", d3 + opt("P2AT", 40)), Ex("wtag", "p2"), X(signal(22, 132)),
          X(*poll_issue(23, 128)), Ex("delay", 36), chk(23, 128, "2")]
    q3 += [pl(j, k) for k in range(4) for j in range(2)]
    q3 += [Ex("at", end - opt("PB", 34)), X(*poll_issue(23, 132)), Ex("delay", 36), chk(23, 132, "1")] + [pl(2, k) for k in range(4)]
    OT = opt("OUTT", 1)
    q4 = []
    if OT:
        q4 = grouped(["s_lshl_b32 %s, %s, 12" % (sr(s_t0), sr(s_w)),
                      "s_add_u32 %s, %s, %d" % (sr(s_t0), sr(s_t0), XCH),
                      "v_and_b32 %s, 15, v1" % vr(t),
                      "v_lshrrev_b32 %s, 5, v1" % vr(t + 1),
                      "v_and_b32 %s, 7, v1" % vr(t + 2),
                      "v_xor_b32 %s, %s, %s" % (vr(t + 1), vr(t + 1), vr(t + 2)),
                      "v_lshlrev_b32 %s, 4, %s" % (vr(t + 1), vr(t + 1)),
                      "v_lshl_add_u32 %s, %s, 7, %s" % (vr(t + 1), vr(t), vr(t + 1)),
                      "v_bfe_u32 %s, v1, 4, 1" % vr(t),
                      "v_lshl_add_u32 %s, %s, 3, %s" % (vr(t + 1), vr(t), vr(t + 1)),
                      "v_add_u32 %s, %s, %s" % (vr(vA0), sr(s_t0), vr(t + 1)),
                      "v_xor_b32 %s, 32, %s" % (vr(vA1), vr(vA0)),
                      "v_xor_b32 %s, 64, %s" % (vr(vA2), vr(vA0)),
                      "v_xor_b32 %s, 96, %s" % (vr(vSP), vr(vA0)),
                      "v_add_u32 %s, %s, %s" % (vr(vTF), sr(s_t0), vr(vL16)),
                      "v_lshrrev_b32 %s, 3, v1" % vr(t),
                      "v_xor_b32 %s, %s, %s" % (vr(t + 2), vr(t + 2), vr(t)),
                      "v_lshlrev_b32 %s, 4, %s" % (vr(t + 2), vr(t + 2)),
                      "v_lshl_add_u32 %s, %s, 11, %s" % (vr(t), vr(t), vr(t + 2)),
                      "s_add_u32 s16, s12, 16384",
                      "s_add_u32 s17, s13, 16384"])
    St.run(end, [(q2, d3 + 14), (q3, None), (q4, None)], name="D3")
    stamp(E, "D done")
    post = []
    for k in range(4):
        f, u = k >> 1, k & 1
        a = AC[0] + 8 * k
        o = ["v_fma_f32 %s, %s, %s, %s" % (vr(a + i), vr(a + i), vr(GB + 8 * u + i), vr(up + 8 * k + i)) for i in range(8)] + pack8(a)
        if OT:
            o += ["ds_write_b64 %s, %s offset:%d" % (vr((vA0, vA1, vA2, vSP)[2 * u + h]), vr(a + 2 * h, 2), 2048 * f) for h in range(2)]
        else:
            o += ["v_permlane16_swap_b32 %s, %s" % (vr(a), vr(a + 2)), "v_permlane16_swap_b32 %s, %s" % (vr(a + 1), vr(a + 3)),
                  "buffer_store_dwordx4 %s, %s, %s, %s offen offset:%d" % (vr(a, 4), vr(t), sr(sOUT, 4), "s13" if f else "s12", 64 * u)]
        post.append(o)
    pend = []
    for k in range(4):
        for j in range(3):
            for m in padd(lambda o: (ar(224 + 16 * j + 4 * k + o, 2) if j < 2 else vr(AC[1] + 4 * k + o, 2)), k):
                E.op(m)
                if j or k > 1:
                    E.ops(pend[:3])
                    pend = pend[3:]
        pend += post[k]
    E.ops(pend)
    if OT:
        OM = opt("OUTM", "nt")
        for q in range(4):
            if q == 0:
                E.wait(lg=4)
            if q == 2:
                E.wait(lg=2)
            E.op("ds_read_b128 %s, %s offset:%d" % (vr(WF + 4 * q, 4), vr(vTF), 1024 * q))
        for q in range(4):
            E.op("buffer_store_dwordx4 %s, %s, %s, %s offen %s" % (vr(WF + 4 * q, 4), vr(t), sr(sOUT, 4), ("s12", "s16", "s13", "s17")[q], OM.replace("_", " ")))
```

```python
import struct
from asmlib import Asm, Ins, TRANS


def f32hex(x):
    return "0x%08x" % struct.unpack("<I", struct.pack("<f", x))[0]


def vr(b, n=1):
    return "v%d" % b if n == 1 else "v[%d:%d]" % (b, b + n - 1)


def ar(b, n=1):
    return "a%d" % b if n == 1 else "a[%d:%d]" % (b, b + n - 1)


def sr(b, n=1):
    return "s%d" % b if n == 1 else "s[%d:%d]" % (b, b + n - 1)


class Em:
    def __init__(self):
        self.A = Asm()
        self.lq = []
        self.vq = []
        self.now = 0
        self.age = 7
        self.agev = 0
        self.tail = []
        self.uid = 0
        self.sm = False
        self.ret = False
        self.tags = set()
        self.tagtime = {}
        self.pollbusy = False
        self.inplace = False
        self.junk = set()
        self.loaded = set()
        self.mode = None

    def label(self, n):
        self.A.label(n)

    def raw(self, t):
        self.A.raw(t)

    def nlines(self):
        return len(self.A.lines)

    @staticmethod
    def _need(q, regs):
        need = None
        for i, e in enumerate(q):
            if e[0] & regs:
                need = len(q) - 1 - i
        return need

    def pending(self, text):
        ins = Ins(text)
        regs = ins.src | ins.dst
        return self._need(self.lq, regs), self._need(self.vq, regs)

    def wait(self, lg=None, vm=None):
        if lg is not None and lg >= len(self.lq) and not (lg == 0 and self.sm):
            lg = None
        if lg == 0:
            self.sm = False
            self.ret = False
        if vm is not None and vm >= len(self.vq):
            vm = None
        if lg is None and vm is None:
            return
        parts = []
        if vm is not None:
            vm = min(vm, 63)
            parts.append("vmcnt(%d)" % vm)
            self.vq = self.vq[len(self.vq) - vm:] if vm else []
        if lg is not None:
            lg = min(lg, 15)
            parts.append("lgkmcnt(%d)" % lg)
            self.lq = self.lq[len(self.lq) - lg:] if lg else []
        self.A.op("s_waitcnt " + " ".join(parts))

    def force_wait(self, lg=False, vm=False):
        parts = []
        if vm:
            parts.append("vmcnt(0)")
            self.vq = []
        if lg:
            parts.append("lgkmcnt(0)")
            self.lq = []
            self.sm = False
            self.ret = False
        self.A.op("s_waitcnt " + " ".join(parts))

    def vm_count(self, tag):
        need = None
        for i, e in enumerate(self.vq):
            if e[1] == tag:
                need = len(self.vq) - 1 - i
        return need

    def wait_tag(self, tag):
        self.wait(vm=self.vm_count(tag))

    def op(self, text, tag=None, batch=False):
        ins = Ins(text)
        ins.dst = ins.dst - self.junk
        regs = ins.src | ins.dst
        if ins.kind == "mfma" and self.mode:
            xs = {r for r in (ins.srcA | ins.srcB) if r[0] == "a"}
            if self.mode == "need" and "x16_" in ins.mn and self.inplace:
                assert not (xs & self.loaded), "raw fragment already modulated: " + text
            elif self.mode == "need":
                assert xs <= self.loaded, "X fragment not loaded yet: " + text
            else:
                assert not (xs & self.loaded), "X fragment already overwritten: " + text
        if ins.kind == "vmem" or ins.mn.startswith("v_accvgpr_write"):
            self.loaded |= {r for r in ins.dst if r[0] == "a"}
        lg = self._need(self.lq, regs)
        vm = self._need(self.vq, regs)
        if lg is not None and batch:
            young = sum(1 for e in self.lq if self.now - e[2] < self.age)
            lg = min(lg, young)
        if vm is not None and self.agev:
            old = [i for i, e in enumerate(self.vq) if e[0] and self.now - e[2] >= self.agev]
            if old:
                vm = min(vm, len(self.vq) - 1 - old[-1])
        self.wait(lg, vm)
        self.A.op(text)
        if ins.kind == "ds":
            self.lq.append((set(ins.dst), tag, self.now))
        elif ins.kind == "vmem":
            self.vq.append((set(ins.dst), tag, self.now))
            self.tags.add(tag)
            self.tagtime[tag] = self.now
        elif ins.kind == "smem":
            if ("s", 87) in ins.dst and "atomic" in text:
                assert not self.pollbusy, "two polls share s87"
                self.pollbusy = True
            self.ret = self.ret or bool(ins.dst)
            self.sm = True

    def ops(self, lst):
        for t in lst:
            self.op(t)

    def newlabel(self, base):
        self.uid += 1
        return "%s_%d" % (base, self.uid)


def cost(t):
    mn = t.split()[0]
    if mn.endswith(":"):
        return 0
    if mn in TRANS:
        return 2
    if mn.startswith(("buffer_", "global_")):
        return 2
    if mn.startswith("ds_write"):
        return 4
    if mn.startswith("v_mfma"):
        return 2
    return 1


class Ex:
    def __init__(self, kind, val=None, tag=None, m0=False, c=None, hol=False):
        self.kind, self.val, self.tag, self.m0 = kind, val, tag, m0
        self.hol = hol
        if kind == "ops":
            self.cost = sum(cost(t) for t in val) if c is None else c
            self.lds = any(t.startswith("ds_") for t in val)
            self.vmem = any(t.startswith(("buffer_", "global_")) for t in val)
            self.urgent = any("atomic" in t for t in val) or m0
            self.store = any(t.startswith("buffer_store") for t in val)
        else:
            self.cost = {"wtag": 1, "sig": 1, "fn": c or 1}.get(kind, 0)
            self.lds = self.vmem = self.store = False
            self.urgent = True


def X(*ops, **kw):
    return Ex("ops", list(ops), **kw)


class Stage:
    def __init__(self, name):
        self.name = name
        self.dma = []
        self.items = []
        self.hold = False
        self.issued = False
        self.weight = 2 if name.startswith("H") else 1
        self.barred = False


class Stream:
    def __init__(self, E, stages, wf, nfr, low=8, high=None, dma_gap=5, dma_start=1):
        self.E = E
        self.stages = stages
        self.wf, self.nfr = wf, nfr
        self.low = low
        self.high = high or 2 * (nfr - 1)
        self.dma_gap, self.dma_start = dma_gap, dma_start
        self.items = []
        for si, st in enumerate(stages):
            for (mf, rd) in st.items:
                self.items.append((si, mf, rd))
        self.first_item = {}
        for i, it in enumerate(self.items):
            self.first_item.setdefault(it[0], i)
        self.cur = 0
        self.rd = 0
        self.dq = []
        self.m0_busy = False
        self.last_dma = -99
        self.nbar = 0
        self.stamp_fn = None
        self.pre_fn = None
        self.wst = None
        self.novm = False
        self.maxrr = 99
        self.rr = 0
        self.hard = 9
        self.budget = 2
        self.vm_gap, self.vm_burst, self.vm_free = 4.5, 10, 0
        self.cap = 0.56
        self.hol_len, self.hol_budget, self.hol_until, self.hol_left = 0, 11, -1, 0
        self.behind = False
        self.fast_gap = 4
        self.drain = 5
        self.prev_vm = False
        self.prev_reads = 1
        self.stat = []

    def queue_dma(self, si):
        if si >= len(self.stages):
            return
        st = self.stages[si]
        if st.issued or st.hold:
            return
        st.issued = True
        for (pre, loads) in st.dma:
            for j, l in enumerate(loads):
                self.dq.append(((pre if j == 0 else []) + [l], "W%d" % si, j == 0, j == len(loads) - 1))

    def issue_dma_now(self, si, groups=None):
        assert not self.m0_busy
        st = self.stages[si]
        if not hasattr(st, "left"):
            st.left = list(st.dma)
        n = len(st.left) if groups is None else groups
        for (pre, loads) in st.left[:n]:
            for t in pre:
                self.E.op(t)
            for l in loads:
                self.E.op(l, tag="W%d" % si)
        st.left = st.left[n:]
        if not st.left:
            st.issued = True

    def flush_dma(self):
        for (ops, tag, o, c) in self.dq:
            for t in ops:
                self.E.op(t, tag=tag)
        self.dq = []
        self.m0_busy = False

    def _rdtext(self, n):
        it = self.items[n >> 1]
        reg = self.wf + 4 * ((n >> 1) % self.nfr) + 2 * (n & 1)
        return it[2][n & 1].replace("%W", vr(reg, 2))

    def barrier(self, si):
        E = self.E
        st = self.stages[si]
        assert st.issued and not any(e[1] == "W%d" % si for e in self.dq), "DMA of stage %s not issued" % st.name
        if self.pre_fn:
            self.pre_fn(si)
        E.wait(lg=0 if si + 3 < len(self.stages) else None, vm=None if self.novm else E.vm_count("W%d" % si))
        if self.stamp_fn:
            self.stamp_fn(si)
        E.A.op("s_barrier")
        st.barred = True
        self.nbar += 1
        self.queue_dma(si + 3)
        self.last_dma = min(self.last_dma, E.now - self.dma_gap + self.dma_start)

    def to_bar(self):
        n = self.rd
        while (n >> 1) < len(self.items) and self.stages[self.items[n >> 1][0]].barred:
            n += 1
        if (n >> 1) >= len(self.items) or self.items[n >> 1][0] + 3 >= len(self.stages):
            return 999
        return n - self.rd + self.drain

    def can_read(self, limit, inpair):
        n = self.rd
        if n >= 2 * limit:
            return False
        done = self.cur if not inpair else self.cur
        return (n >> 1) - self.nfr < done

    def preread(self, cnt):
        for _ in range(cnt):
            si = self.items[self.rd >> 1][0]
            if not self.stages[si].barred:
                self.barrier(si)
            assert (self.rd >> 1) - self.nfr < self.cur
            self.E.op(self._rdtext(self.rd))
            self.rd += 1

    def run(self, end_item, queues, rd_limit=None, open_next=True, flush=True, name="", carry=False):
        E = self.E
        rd_limit = end_item if rd_limit is None else min(rd_limit, len(self.items))
        qs = [dict(q=list(q), dl=dl, until=-1, bar=None) for q, dl in queues]
        E.label("S_" + name.replace("+", "_"))
        l0 = E.nlines()
        nm = 0
        forced = 0
        over = 0
        next_stage = self.items[end_item][0] if end_item < len(self.items) else None

        def head(s, draining):
            while s["q"]:
                e = s["q"][0]
                if e.kind == "bar":
                    if s["bar"] is None:
                        s["bar"] = self.nbar
                    if self.nbar > s["bar"]:
                        s["bar"] = None
                        s["q"].pop(0)
                        continue
                    return None
                if e.kind == "by":
                    s["q"].pop(0)
                    continue
                if e.kind == "sig":
                    t0 = E.tagtime.get(e.val[0])
                    if t0 is None or E.now - t0 < e.val[1] or E.now < s["until"] or self.to_bar() < 38:
                        return None
                    s["q"][0] = Ex("wtag", e.val[0])
                    continue
                if e.kind == "need":
                    assert e.val in E.tags, "tag %s has not been issued" % e.val
                    s["q"].pop(0)
                    continue
                if e.kind == "delay":
                    s["until"] = E.now + e.val
                    s["q"].pop(0)
                    continue
                if e.kind == "at":
                    if self.cur >= e.val:
                        s["q"].pop(0)
                        continue
                    return None
                if E.now < s["until"]:
                    return None
                if e.m0 and self.m0_busy:
                    return None
                if e.hol and self.hol_len and self.dq and E.now >= self.hol_until:
                    return None
                if e.lds and draining:
                    return None
                return e
            return None

        def emit_ex(e):
            if e.kind == "ops":
                for t in e.val:
                    if t.endswith(":"):
                        E.label(t[:-1])
                    else:
                        E.op(t, tag=e.tag)
            elif e.kind == "wtag":
                if self.wst:
                    self.wst("[" + e.val)
                E.wait_tag(e.val)
                if self.wst:
                    self.wst(e.val + "]")
            elif e.kind == "fn":
                if self.wst:
                    self.wst("[chk")
                e.val(E)
                if self.wst:
                    self.wst("chk]")

        while self.cur < end_item:
            si, mf, rdt = self.items[self.cur]
            for s in qs:
                due = [i for i, e in enumerate(s["q"]) if e.kind == "by" and e.val <= self.cur]
                if due:
                    for e in s["q"][:due[-1]]:
                        if e.kind in ("ops", "wtag", "fn"):
                            forced += e.cost
                            emit_ex(e)
                    s["q"] = s["q"][due[-1] + 1:]
            assert self.rd >= 2 * self.cur + 2, "fragment not read in time"
            wreg = vr(self.wf + 4 * (self.cur % self.nfr), 4)
            for j, m in enumerate(mf):
                E.op(m.replace("%W", wreg), batch=True)
                nm += 1
                last = (j == len(mf) - 1)
                if last:
                    self.cur += 1
                E.now += 1
                budget = self.budget
                if self.cur < end_item:
                    nx = self.items[self.cur][1][0 if last else j + 1].replace("%W", vr(self.wf + 4 * (self.cur % self.nfr), 4))
                    if self.rd >= 2 * self.cur + 2 and any(p is not None for p in E.pending(nx)):
                        budget -= 1
                press = 0
                for k, s in enumerate(qs):
                    if s["dl"] is None or not s["q"]:
                        continue
                    gaps = 2 * (s["dl"] - self.cur)
                    need = 0
                    for s2 in qs[:k + 1]:
                        for e in s2["q"]:
                            if e.kind == "at" and e.val >= s["dl"]:
                                break
                            need += e.cost
                    first = next((e for e in s["q"] if e.kind not in ("delay",)), None)
                    if first is not None and first.kind == "at" and first.val > self.cur:
                        continue
                    need += 2 * max(0, len(self.dq) - 8)
                    if need > self.cap * gaps:
                        press = max(press, 1)
                    if need > (self.cap + 1) * gaps:
                        press = 2
                budget += press
                rd0 = self.rd
                vp0 = self.prev_vm
                vm0 = self.prev_vm or (self.vm_free - E.now > self.vm_burst)
                self.prev_vm = False
                full = budget

                def read():
                    E.op(self._rdtext(self.rd))
                    self.rd += 1

                def take(s, e):
                    n0 = E.nlines()
                    emit_ex(e)
                    s["q"].pop(0)
                    if e.vmem:
                        self.prev_vm = True
                        self.vm_free = max(self.vm_free, E.now) + self.vm_gap
                    if e.hol and E.now >= self.hol_until:
                        self.hol_until = E.now + self.hol_len
                        self.hol_left = self.hol_budget
                    return max(e.cost, E.nlines() - n0)
                while True:
                    base = 2 * self.cur + (0 if last else 1)
                    lead = self.rd - base
                    want_bar = None
                    if self.rd < 2 * rd_limit:
                        rs = self.items[self.rd >> 1][0]
                        if not self.stages[rs].barred:
                            want_bar = rs
                    elif open_next and next_stage is not None and not self.stages[next_stage].barred \
                            and self.rd >= 2 * end_item and self.stages[next_stage].issued:
                        want_bar = next_stage
                    draining = want_bar is not None
                    heads = [(s, head(s, draining)) for s in qs]
                    heads = [(s, e) for s, e in heads if e is not None]
                    urg = [(s, e) for s, e in heads if e.urgent]
                    if urg and not draining:
                        budget -= take(*urg[0])
                        continue
                    if budget <= 0:
                        break
                    heads = [(s, e) for s, e in heads if not e.urgent]
                    mine = draining and any(d[1] == "W%d" % want_bar for d in self.dq)
                    if draining:
                        aged = all(E.now - e[2] >= self.drain for e in E.lq) or want_bar + 3 >= len(self.stages)
                        if (aged or lead <= 4) and not mine and budget == full:
                            self.barrier(want_bar)
                            budget -= 2
                            continue
                    rd_ok = (not draining) and self.can_read(rd_limit, not last)
                    nread = self.rd - rd0
                    if rd_ok and (lead < self.hard or (lead < self.low and self.prev_reads == 0 and (len(mf) <= 2 or nread == 0))):
                        read()
                        budget -= 1
                        continue
                    gap = self.dma_gap if len(self.dq) <= 8 and not self.behind else self.fast_gap
                    if self.rd >= 2 * rd_limit:
                        gap = self.fast_gap
                    if E.now < self.hol_until and self.hol_left <= 0 and not mine:
                        gap = 999
                        self.behind = True
                    if not self.dq:
                        self.behind = False
                    dma_due = self.dq and (E.now - self.last_dma >= gap or mine)
                    if self.dq and len(self.dq[0][0]) > 1 and (E.now - self.last_dma >= gap - 3 or mine) \
                            and (nread or not rd_ok or budget < full):
                        ops, tag, o, c = self.dq[0]
                        self.m0_busy = True
                        E.op(ops[0])
                        self.dq[0] = (ops[1:], tag, o, c)
                        budget -= 1
                        continue
                    if budget >= 2 and not ((vm0 or self.prev_vm) and not mine):
                        if dma_due and len(self.dq[0][0]) == 1:
                            ops, tag, o, c = self.dq.pop(0)
                            E.op(ops[0], tag=tag)
                            self.m0_busy = not c
                            self.last_dma = E.now
                            self.hol_left -= 1
                            self.vm_free = max(self.vm_free, E.now) + self.vm_gap * self.stages[int(tag[1:])].weight
                            self.prev_vm = True
                            budget -= 2
                            continue
                    blocked = lambda e: e.vmem and ((vp0 if e.store else vm0) or self.prev_vm)
                    heads = [(s, e) for s, e in heads if not blocked(e)]
                    big = [(s, e) for s, e in heads[:1] if e.cost >= 2]
                    if big and budget >= 2:
                        budget -= take(*big[0])
                        continue
                    if rd_ok and nread == 0 and lead < self.high:
                        read()
                        budget -= 1
                        continue
                    if rd_ok and lead < self.low and self.rr < self.maxrr:
                        read()
                        budget -= 1
                        continue
                    small = [(s, e) for s, e in heads if e.cost <= budget]
                    if small:
                        budget -= take(*small[0])
                        continue
                    if rd_ok and lead < self.high and self.rr < self.maxrr:
                        read()
                        budget -= 1
                        continue
                    break
                self.prev_reads = self.rd - rd0
                self.rr = self.rr + 1 if self.rd - rd0 >= 2 else 0
                if budget < 0:
                    over -= budget
            for s in qs:
                if s["dl"] is not None and self.cur >= s["dl"] and s["q"]:
                    left = sum(e.cost for e in s["q"])
                    print("   [sched] %s: deadline flush of %d slots at item %d" % (name, left, self.cur))
                    self._flush(s, emit_ex)
        left = [sum(e.cost for e in s["q"]) for s in qs]
        print("   [sched] %-10s mfma %d lines %d left %s dq %d forced %d" % (name, nm, E.nlines() - l0, left, len(self.dq), forced))
        if flush:
            for s in qs:
                head(s, True)
            self.flush_dma()
            if open_next and next_stage is not None and not self.stages[next_stage].barred and self.stages[next_stage].issued:
                self.barrier(next_stage)
                self.flush_dma()
            for s in qs:
                self._flush(s, emit_ex)
            return None
        if not carry:
            assert all(e.kind in ("delay", "at", "by") for s in qs for e in s["q"]), "extras left over"
        return [s["q"] for s in qs]

    def _flush(self, s, emit_ex):
        for e in s["q"]:
            if e.kind == "bar":
                assert s["bar"] is not None and self.nbar > s["bar"], "flush across a pending barrier marker"
                s["bar"] = None
            elif e.kind in ("delay", "at", "by", "need"):
                pass
            elif e.kind == "sig":
                assert e.val[0] in self.E.tags
                self.E.wait_tag(e.val[0])
            else:
                if e.m0 and self.m0_busy:
                    self.flush_dma()
                emit_ex(e)
        s["q"] = []
```

```python
import os
import sys

sys.path.insert(0, os.path.dirname(os.path.abspath(__file__)))
from m3lib import *

NAME = "adaLN_cond__sliding_local_dilated__glu_gated_swiglu__prompt"
L = NAME + "_kernel"
S, D, F = 2048, 1024, 3584
KB, MB = 1 << 10, 1 << 20
DBG = os.environ.get("DBG", "").split(",")
STOP = int(os.environ.get("STOP", "99"))


def opt(name, default):
    return type(default)(os.environ.get(name, default))


def NT(k):
    return " nt" if k in opt("NT", "_") else ""


WS_CNT = 0
WS_P1 = 512 * KB
WS_P2 = 576 * KB
WS_ST = 704 * KB
WS_HALO = 1 * MB
WS_O = 2 * MB
WS_X1 = 6 * MB
WS_HH = 10 * MB
WS_PART = 25 * MB
WS_STAMP = 64 * MB
WS_SIZE = 72 * MB
OOB = 0x7ffffff0
LIMIT = opt("LIMIT", 1 << 22)

MISC = 131072
TD = MISC
TE = MISC + 8704
CS = MISC + 12800
GT = MISC + 13312
LCNT = MISC + 13824
XCH = MISC + 16384

sX, sQKV, sWO, sW1, sW3, sW2, sWH, sWM, sWS, sOUT, sT = 28, 32, 36, 40, 44, 48, 52, 56, 60, 64, 68
s_w, s_rb, s_c, s_cw, s_LW, s_d, s_t0, s_t1, s_t2, s_cnt = 72, 73, 74, 75, 76, 77, 78, 79, 80, 81
s_bq, s_bo, s_bf, s_bh, s_bm = 82, 83, 84, 85, 86
s_P = 87
s_OW, s_HW, s_oT, s_x = 88, 89, 90, 91
s_hm0, s_one = 68, 69
s_hsv = 85
s_oHS, s_oHP, s_eH, s_oH0 = 97, 98, 99, 100
s_i = 101
JUNKCNT = WS_CNT + 320 * KB
s_st = 92
s_oob = 96
s_pc = 0
s_pf = 3
s_bd4 = 97
s_hb, s_hh, s_hx, s_pt = 4, 5, 6, 7
s_bf2, s_hx2 = 25, 26
s_msk = 4

T0 = 2
aW = [[10, 11, 12, 13], [14, 15, 16, 17]]
aH = [[18, 19], [20, 21]]
vDq, vD2, vDf, vDh, vDm = 22, 26, 30, 34, 38
vDd, vDe = 38, 42
vL16 = 46
vST0, vST1 = 47, 48
vTF, vTH, vSP, vONE = 49, 50, 51, 52
vA0, vA1, vA2, vA3 = 53, 54, 55, 56
vJUNK = 57
vPF, vCP = 8, 9
RC = 58
RT = 60
CM = 68
TX = 76
WF, NFR = 80, 12
AC = [128, 160, 192, None, 224]
U = 224


def XR(ks, f, n=4, o=0):
    return ar(8 * ks + 4 * f + o, n)


def srd(E, d, lo, size):
    E.op("s_mov_b32 s%d, s%d" % (d, lo))
    E.op("s_mov_b32 s%d, s%d" % (d + 1, lo + 1))
    E.op("s_mov_b32 s%d, 0x%x" % (d + 2, size))
    E.op("s_mov_b32 s%d, 0x20000" % (d + 3))


NSTAMP = [0]
STAMP_NAMES = []


STAMP_ON = [opt("SFROM", "") == ""]


def stamp(E, name):
    if "jit" in DBG and name != "end":
        jitter(E, 4)
    if "stamp" not in DBG:
        return
    if name == opt("SFROM", ""):
        STAMP_ON[0] = True
    if (not STAMP_ON[0] and name != "entry") or (NSTAMP[0] >= 63 and name != "end"):
        return
    i = NSTAMP[0]
    NSTAMP[0] += 1
    STAMP_NAMES.append(name)
    assert i < 64
    E.wait(lg=0)
    E.A.op("s_memtime s[%d:%d]" % (s_st, s_st + 1))
    E.A.op("s_memrealtime s[%d:%d]" % (s_st + 2, s_st + 3))
    E.A.op("s_waitcnt lgkmcnt(0)")
    E.op("v_writelane_b32 %s, s%d, %d" % (vr(vST0), s_st, i))
    E.op("v_writelane_b32 %s, s%d, %d" % (vr(vST1), s_st + 2, i))


def jitter(E, bits, perwg=False):
    if "jit" not in DBG:
        return
    A = E.A
    lab = E.newlabel("jt")
    E.force_wait(lg=True)
    A.op("s_memrealtime s[92:93]")
    A.op("s_waitcnt lgkmcnt(0)")
    if perwg:
        A.op("s_lshr_b32 s92, s92, 12")
    A.op("s_add_u32 s92, s92, s2")
    A.op("s_mul_i32 s92, s92, 0x9e3779b1")
    A.op("s_lshr_b32 s93, s92, 13")
    A.op("s_xor_b32 s92, s92, s93")
    A.op("s_mul_i32 s92, s92, 0x85ebca6b")
    A.op("s_lshr_b32 s93, s92, 30")
    A.op("s_cmp_lg_u32 s93, 0")
    A.op("s_cbranch_scc1 %s_e" % lab)
    A.op("s_bfe_u32 s92, s92, 0x%x" % ((bits << 16) | 8))
    A.label(lab)
    A.op("s_sleep 8")
    A.op("s_sub_u32 s92, s92, 1")
    A.op("s_cmp_gt_i32 s92, 0")
    A.op("s_cbranch_scc1 %s" % lab)
    A.label(lab + "_e")


def rnd_hi(E, v, t):
    E.op("v_cvt_pk_bf16_f32 %s, %s, %s" % (vr(t), vr(v), vr(v)))
    E.op("v_lshlrev_b32 %s, 16, %s" % (vr(v), vr(t)))


def vsignal(vaddr):
    return "buffer_atomic_add %s, %s, %s, 0 offen sc1" % (vr(vONE), vr(vaddr), sr(sWS, 4))


def _imm(imm):
    return " offset:%d" % imm if imm else ""


def signal(soff, imm=0, data=s_one):
    return "s_atomic_add %s, %s, %s%s" % (sr(data), sr(sWS, 2), sr(soff), _imm(imm))


def poll_issue(soff, imm=0, sp=s_P, val=0):
    return ["s_mov_b32 %s, %d" % (sr(sp), val), "s_atomic_add %s, %s, %s%s glc" % (sr(sp), sr(sWS, 2), sr(soff), _imm(imm))]


def poll_check(E, soff, imm, expect, first=None):
    lab = E.newlabel("pl")
    assert E.pollbusy
    E.pollbusy = False
    if E.ret:
        E.wait(lg=0)
    E.op("s_cmp_lt_u32 %s, %s" % (sr(s_P), expect if first is None else first))
    E.op("s_cbranch_scc1 %s_slow" % lab)
    E.label(lab + "_ok")
    E.tail += [lab + "_slow:", "s_mov_b32 %s, 0" % sr(s_cnt), lab + "_loop:"] + poll_issue(soff, imm) + [
        "s_add_u32 %s, %s, 1" % (sr(s_cnt), sr(s_cnt)),
        "s_waitcnt lgkmcnt(0)",
        "s_cmp_ge_u32 %s, %s" % (sr(s_P), expect),
        "s_cbranch_scc1 %s_ok" % lab,
        "s_cmp_lt_u32 %s, 0x%x" % (sr(s_cnt), LIMIT),
        "s_cbranch_scc1 %s_loop" % lab,
        "s_branch %s_ok" % lab]


def poll8_issue(E, imm, lab, wave, pre=None):
    E.op("s_cmp_lg_u32 %s, %d" % (sr(s_w), wave))
    E.op("s_cbranch_scc1 %s_noi" % lab)
    if pre:
        pre()
    for q in range(8):
        E.ops(poll_issue(s_oH0, imm + 2048 * q, 4 + q))
    E.label(lab + "_noi")


def poll8_check(E, imm, lab, wave):
    A = E.A
    E.wait(lg=0)
    E.op("s_cmp_lg_u32 %s, %d" % (sr(s_w), wave))
    E.op("s_cbranch_scc1 %s_done" % lab)
    E.op("s_mov_b32 %s, 0" % sr(s_cnt))
    E.label(lab + "_loop")
    for q in range(1, 8):
        E.op("s_min_u32 s4, s4, s%d" % (4 + q))
    E.op("s_cmp_ge_u32 s4, 32")
    E.op("s_cbranch_scc1 %s_done" % lab)
    for q in range(8):
        for t in poll_issue(s_oH0, imm + 2048 * q, 4 + q):
            A.op(t)
    E.op("s_add_u32 %s, %s, 1" % (sr(s_cnt), sr(s_cnt)))
    E.op("s_cmp_lt_u32 %s, 0x%x" % (sr(s_cnt), LIMIT))
    A.op("s_waitcnt lgkmcnt(0)")
    E.op("s_cbranch_scc1 %s_loop" % lab)
    E.label(lab + "_done")


def blk_off(dst, c_sgpr, idx):
    return ["s_lshl_b32 %s, %s, 4" % (sr(dst), sr(s_rb)),
            "s_add_u32 %s, %s, %s" % (sr(dst), sr(dst), sr(c_sgpr)),
            "s_lshl_b32 %s, %s, 10" % (sr(dst), sr(dst)),
            "s_add_u32 %s, %s, %d" % (sr(dst), sr(dst), WS_CNT + 256 * 128 + idx * 128)]


def xgroup_reduce_n(E, vs, ts, opn):
    for v, t in zip(vs, ts):
        E.op("v_mov_b32 %s, %s" % (vr(t), vr(v)))
    for v, t in zip(vs, ts):
        E.op("v_permlane32_swap_b32 %s, %s" % (vr(v), vr(t)))
    for v, t in zip(vs, ts):
        E.op("%s %s, %s, %s" % (opn, vr(v), vr(v), vr(t)))
    for v, t in zip(vs, ts):
        E.op("v_mov_b32 %s, %s" % (vr(t), vr(v)))
    for v, t in zip(vs, ts):
        E.op("v_permlane16_swap_b32 %s, %s" % (vr(v), vr(t)))
    for v, t in zip(vs, ts):
        E.op("%s %s, %s, %s" % (opn, vr(v), vr(v), vr(t)))


STAGES = []


def add_stage(name, srd_, groups, items_fn):
    st = Stage(name)
    slot = (len(STAGES) + 3) % 4
    for gi, (sbase, const, n, vv) in enumerate(groups):
        if "samew" in DBG and len(STAGES) >= 4:
            srd_, sbase, const, vv = sQKV, s_bq, 2048 + 128 * 6144 * (2 * slot + gi), vDq
        pre = ["s_add_u32 m0, %s, %d" % (sr(s_LW), slot * 32768 + gi * 4096),
               "s_add_u32 %s, %s, 0x%x" % (sr(s_d), sr(sbase), const)]
        loads = ["buffer_load_dwordx4 %s, %s, %s offen offset:%d%s lds" % (vr(vv + i), sr(srd_, 4), sr(s_d), 1024 * i, NT("M") if name == "M" else "")
                 for i in range(n)]
        if "nodma" in DBG and len(STAGES) > 3:
            continue
        st.dma.append((pre, loads))
    st.items = items_fn(slot)
    STAGES.append(st)
    return st


def rd_std(slot, ksl, t):
    return ["ds_read_b64_tr_b16 %%W, %s offset:%d" % (vr(aW[slot >> 1][t]), (slot & 1) * 32768 + h * 16384 + ksl * 1024)
            for h in range(2)]


def rd_h(slot, ksl, t):
    return ["ds_read_b64_tr_b16 %%W, %s offset:%d" % (vr(aH[slot >> 1][t & 1]), (slot & 1) * 32768 + (t >> 1) * 16384 + h * 8192 + ksl * 1024)
            for h in range(2)]


def acc_reg(s, f, t):
    return AC[s] + 16 * f + 4 * t


def acc_txt(aset, f, t):
    if aset == 3:
        return ar(224 + 16 * f + 4 * t, 4)
    return vr(acc_reg(aset, f, t), 4)


def gstages(name, srd_, groups, swap=False, himg=False, hook=None, q0=0):
    first = len(STAGES)
    for q in range(0, len(groups), 2):
        gs = groups[q:q + 2]

        def items(slot, gs=gs):
            out = []
            for gi, (sb, const, vv, aset, x0) in enumerate(gs):
                for i in range(4):
                    ks = x0 + i
                    for t in range(4):
                        mf = []
                        for f in range(2):
                            a = acc_txt(aset, f, t)
                            ops = (XR(ks, f), "%W") if swap else ("%W", XR(ks, f))
                            mf.append("v_mfma_f32_16x16x32_bf16 %s, %s, %s, %s" % (a, ops[0], ops[1], "0" if ks == 0 else a))
                        out.append((mf, (rd_h if himg else rd_std)(slot, 4 * gi + i, t)))
            return out
        if hook and q // 2 == hook[0]:
            hook[1]()
        add_stage("%s.%d" % (name, q0 + q // 2), srd_, [(g[0], g[1], 4, g[2]) for g in gs], items)
    return first


def sweep(name, srd_, vD, sbase, pitch, col, aset, **kw):
    return gstages(name, srd_, [(sbase, 128 * g * pitch + col, vD, aset, 4 * g) for g in range(8)], **kw)


def row_consts(E, vsum, vsq):
    for r in range(1, 4):
        for f in range(2):
            E.op("v_cndmask_b32 %s, %s, %s, %s" % (vr(vsq[f]), vr(vsq[f]), vr(vsq[f] + r), sr(10 + 2 * r, 2)))
    for f in range(2):
        E.op("ds_bpermute_b32 %s, %s, %s" % (vr(vsq[f] + 1), vr(vMA + 2), vr(vsq[f])))
    for f in range(2):
        E.op("v_mul_f32 %s, %s, %s" % (vr(vsum[f]), f32hex(1.0 / 1024), vr(vsum[f])))
    for f in range(2):
        E.op("v_mul_f32 %s, %s, %s" % (vr(vsum[f] + 1), vr(vsum[f]), vr(vsum[f])))
    for f in range(2):
        E.op("v_mul_f32 %s, %s, %s" % (vr(vsq[f] + 1), f32hex(1.0 / 1024), vr(vsq[f] + 1)))
    finish_consts(E, [vsum[f] for f in range(2)], [vsq[f] + 1 for f in range(2)], [vsum[f] + 1 for f in range(2)],
                  [vsum[f] + 2 for f in range(2)])


def finish_consts(E, mean, ex2, msq, tmp, cm=True):
    for f in range(2):
        E.op("v_sub_f32 %s, %s, %s" % (vr(ex2[f]), vr(ex2[f]), vr(msq[f])))
    for f in range(2):
        E.op("v_max_f32 %s, 0, %s" % (vr(ex2[f]), vr(ex2[f])))
    for f in range(2):
        rnd_hi(E, ex2[f], tmp[f])
    for f in range(2):
        E.op("v_add_f32 %s, %s, %s" % (vr(ex2[f]), f32hex(1e-5), vr(ex2[f])))
    for f in range(2):
        rnd_hi(E, ex2[f], tmp[f])
    for f in range(2):
        E.op("v_sqrt_f32 %s, %s" % (vr(ex2[f]), vr(ex2[f])))
    for f in range(2):
        E.op("v_sub_f32 %s, 0, %s" % (vr(mean[f]), vr(mean[f])))
    for f in range(2):
        E.op("v_cvt_pk_bf16_f32 %s, %s, %s" % (vr(tmp[f]), vr(ex2[f]), vr(mean[f])))
    for f in range(2):
        E.op("v_lshlrev_b32 %s, 16, %s" % (vr(TX + f), vr(tmp[f])))
    for f in range(2 if cm else 0):
        E.op("v_cndmask_b32 %s, 0, %s, s[18:19]" % (vr(RT + 4 * f), vr(tmp[f])))
        E.op("v_cndmask_b32 %s, 0, %s, s[18:19]" % (vr(RT + 4 * f + 3), vr(tmp[f])))
    for f in range(2):
        E.op("v_rcp_f32 %s, %s" % (vr(RC + f), vr(TX + f)))


def table_loads(E, base, kstride, off_s, off_g, R):
    E.op("v_lshlrev_b32 %s, 4, v0" % vr(T0))
    for which, off in enumerate((off_s, off_g)):
        for k in range(4):
            E.op("s_mov_b32 %s, 0x%x" % (sr(s_t0), base + k * kstride + off))
            E.op("buffer_load_dwordx4 %s, %s, %s, %s offen sc1" % (vr(R + 16 * which + 4 * k, 4), vr(T0), sr(sWS, 4), sr(s_t0)))


def table_build(E, R, nat, P=None):
    t = T0
    E.op("v_lshrrev_b32 %s, 3, v0" % vr(t))
    if nat:
        E.op("v_bfe_u32 %s, v0, 1, 2" % vr(t + 1))
        E.op("v_and_b32 %s, 1, v0" % vr(t + 2))
    else:
        E.op("v_and_b32 %s, 3, v0" % vr(t + 1))
        E.op("v_bfe_u32 %s, v0, 2, 1" % vr(t + 2))
    E.op("v_mul_u32_u24 %s, 272, %s" % (vr(t + 3), vr(t)))
    E.op("v_lshl_add_u32 %s, %s, 6, %s" % (vr(t + 3), vr(t + 1), vr(t + 3)))
    if nat:
        E.op("v_lshl_add_u32 %s, %s, 3, %s" % (vr(t + 3), vr(t + 2), vr(t + 3)))
        E.op("v_add_u32 %s, %d, %s" % (vr(t + 3), TD, vr(t + 3)))
        E.op("v_lshlrev_b32 %s, 7, %s" % (vr(t + 4), vr(t)))
        E.op("v_lshl_add_u32 %s, %s, 5, %s" % (vr(t + 4), vr(t + 1), vr(t + 4)))
        E.op("v_lshl_add_u32 %s, %s, 2, %s" % (vr(t + 4), vr(t + 2), vr(t + 4)))
        E.op("v_add_u32 %s, %d, %s" % (vr(t + 4), TE, vr(t + 4)))
    else:
        E.op("v_add_u32 %s, %d, %s" % (vr(t + 3), TD, vr(t + 3)))
        E.op("v_mul_u32_u24 %s, %d, %s" % (vr(t + 4), XCH - TD + 8, vr(t + 2)))
        E.op("v_add_u32 %s, %s, %s" % (vr(t + 4), vr(t + 3), vr(t + 4)))
        E.op("v_xor_b32 %s, 8, %s" % (vr(t + 3), vr(t + 4)))
    P = R + 32 if P is None else P
    for z in (1, 3, 4, 6):
        E.op("v_mov_b32 %s, 0" % vr(P + z))
    for b in (R, R + 16):
        for x in (0, 2):
            E.op("v_pk_add_f32 %s, %s, %s" % (vr(b + x, 2), vr(b + x, 2), vr(b + 4 + x, 2)))
            E.op("v_pk_add_f32 %s, %s, %s" % (vr(b + 8 + x, 2), vr(b + 8 + x, 2), vr(b + 12 + x, 2)))
        for x in (0, 2):
            E.op("v_pk_add_f32 %s, %s, %s" % (vr(b + x, 2), vr(b + x, 2), vr(b + 8 + x, 2)))
    G = R + 16
    for x in (0, 2):
        E.op("v_cvt_pk_bf16_f32 %s, %s, %s" % (vr(G + 4 + x), vr(G + x), vr(G + x + 1)))
    for x in (0, 2):
        E.op("v_lshlrev_b32 %s, 16, %s" % (vr(G + x), vr(G + 4 + x)))
        E.op("v_and_b32 %s, 0xffff0000, %s" % (vr(G + x + 1), vr(G + 4 + x)))
    for r in range(4):
        E.op("v_add_f32 %s, 1.0, %s" % (vr(G + r), vr(G + r)))
    for r in range(4):
        E.op("v_cvt_pk_bf16_f32 %s, %s, %s" % (vr(P + 8 + r), vr(R + r), vr(G + r)))
    E.op("v_lshrrev_b32 %s, 16, %s" % (vr(P + 0), vr(P + 8)))
    E.op("v_and_b32 %s, 0xffff0000, %s" % (vr(P + 2), vr(P + 9)))
    E.op("v_lshrrev_b32 %s, 16, %s" % (vr(P + 5), vr(P + 10)))
    E.op("v_and_b32 %s, 0xffff0000, %s" % (vr(P + 7), vr(P + 11)))
    for r in range(4):
        E.op("ds_write_b64 %s, %s offset:%d" % (vr(t + 3), vr(P + 2 * r, 2), 16 * r))
    if nat:
        E.op("ds_write2_b32 %s, %s, %s offset0:0 offset1:2" % (vr(t + 4), vr(P + 8), vr(P + 9)))
        E.op("ds_write2_b32 %s, %s, %s offset0:4 offset1:6" % (vr(t + 4), vr(P + 10), vr(P + 11)))
    else:
        for r in range(4):
            E.op("ds_write2_b32 %s, %s, %s offset0:%d offset1:%d" % (vr(t + 4), vr(P + 8 + r), vr(P + 1), 4 * r, 4 * r + 1))


NA = 4
Areg = [AC[1] + 8 * i for i in range(NA)]
Dreg = [U, U + 8, U + 16, AC[2] + 16]


def mod_rd(ks):
    return ["ds_read_b128 %s, %s offset:%d" % (vr(Areg[ks % NA], 4), vr(vMA), 272 * ks),
            "ds_read_b64 %s, %s offset:%d" % (vr(Areg[ks % NA] + 4, 2), vr(vMA + 1), 128 * ks)]


vMA = AC[2] + 12


def mod_addrs(E):
    t = T0
    E.op("v_and_b32 %s, 15, v1" % vr(t))
    E.op("v_lshrrev_b32 %s, 2, %s" % (vr(t + 1), vr(t)))
    E.op("v_lshrrev_b32 %s, 4, v1" % vr(t + 2))
    E.op("v_cmp_eq_u32 vcc, %s, %s" % (vr(t + 1), vr(t + 2)))
    E.op("v_lshl_add_u32 %s, %s, 4, %s" % (vr(t + 3), vr(t + 1), vr(t)))
    E.op("v_lshlrev_b32 %s, 2, %s" % (vr(vMA + 2), vr(t + 3)))
    E.op("v_lshlrev_b32 %s, 4, %s" % (vr(t + 1), vr(t)))
    E.op("v_mov_b32 %s, 256" % vr(t + 2))
    E.op("v_cndmask_b32 %s, %s, %s, vcc" % (vr(t + 1), vr(t + 2), vr(t + 1)))
    E.op("v_add_u32 %s, %d, %s" % (vr(vMA), TD, vr(t + 1)))
    E.op("v_lshlrev_b32 %s, 3, %s" % (vr(t), vr(t)))
    E.op("v_add_u32 %s, %d, %s" % (vr(vMA + 1), TE, vr(t)))
    E.op("v_and_b32 %s, 3, v1" % vr(t))
    for r in range(1, 4):
        E.op("v_cmp_eq_u32 %s, %d, %s" % (sr(10 + 2 * r, 2), r, vr(t)))
    E.op("v_cmp_gt_u32 %s, 16, v1" % sr(18, 2))
    for f in range(2):
        E.op("v_mov_b32 %s, 0" % vr(RT + 4 * f + 1))
        E.op("v_mov_b32 %s, 0" % vr(RT + 4 * f + 2))


def mod_prepare(E):
    for ks in range(4):
        E.ops(mod_rd(ks))


def mod_post(d, n):
    x = 4 * n
    return ["v_cvt_pk_bf16_f32 %s, %s, %s" % (vr(d), vr(d), vr(d + 1)),
            "v_cvt_pk_bf16_f32 %s, %s, %s" % (vr(d + 1), vr(d + 2), vr(d + 3)),
            "v_cvt_pk_bf16_f32 %s, %s, %s" % (vr(d + 4), vr(d + 4), vr(d + 5)),
            "v_cvt_pk_bf16_f32 %s, %s, %s" % (vr(d + 5), vr(d + 6), vr(d + 7)),
            "v_accvgpr_write_b32 %s, %s" % (ar(x), vr(d)),
            "v_accvgpr_write_b32 %s, %s" % (ar(x + 1), vr(d + 1)),
            "v_accvgpr_write_b32 %s, %s" % (ar(x + 2), vr(d + 4)),
            "v_accvgpr_write_b32 %s, %s" % (ar(x + 3), vr(d + 5))]


def mod_mfma(n):
    ks, f = n >> 1, n & 1
    a, d = Areg[ks % NA], Dreg[n % 4]
    return ["v_mfma_f32_16x16x16_bf16 %s, %s, %s, 0" % (vr(d, 4), vr(a + 4, 2), vr(RT + 4 * f, 2)),
            "v_mfma_f32_16x16x16_bf16 %s, %s, %s, 0" % (vr(d + 4, 4), vr(a + 4, 2), vr(RT + 4 * f + 2, 2)),
            "v_mfma_f32_16x16x16_bf16 %s, %s, %s, %s" % (vr(d, 4), vr(a, 2), XR(ks, f, 2), vr(d, 4)),
            "v_mfma_f32_16x16x16_bf16 %s, %s, %s, %s" % (vr(d + 4, 4), vr(a + 2, 2), XR(ks, f, 2, 2), vr(d + 4, 4))]


NR = 5
RAW = [160, 192]
M2A = 224
M2D = [240, 248, CM]


def raw_reg(n):
    return RAW[n & 1] + 2 + 6 * ((n >> 1) % NR)


def raw_load(base, n):
    ops = []
    if n % 4 == 0:
        ops.append("s_add_u32 %s, %s, 0x%x" % (sr(s_x), sr(s_OW), base + 4096 * (n // 4)))
    ops.append("buffer_load_dwordx4 %s, %s, %s, %s offen offset:%d sc1" % (vr(raw_reg(n), 4), vr(vL16), sr(sWS, 4), sr(s_x), 1024 * (n % 4)))
    return ops


def mod2_prepare(E):
    t = T0
    E.op("v_and_b32 %s, 15, v1" % vr(t))
    E.op("v_lshrrev_b32 %s, 2, %s" % (vr(t + 1), vr(t)))
    E.op("v_lshrrev_b32 %s, 4, v1" % vr(t + 2))
    E.op("v_cmp_eq_u32 vcc, %s, %s" % (vr(t + 1), vr(t + 2)))
    E.op("v_lshlrev_b32 %s, 4, %s" % (vr(t + 1), vr(t)))
    E.op("v_mov_b32 %s, %d" % (vr(t + 2), TD + 256))
    E.op("v_add_u32 %s, %d, %s" % (vr(t + 3), TD, vr(t + 1)))
    E.op("v_add_u32 %s, %d, %s" % (vr(t + 4), XCH, vr(t + 1)))
    E.op("v_cndmask_b32 %s, %s, %s, vcc" % (vr(vA0), vr(t + 2), vr(t + 3)))
    E.op("v_cndmask_b32 %s, %s, %s, vcc" % (vr(vA1), vr(t + 2), vr(t + 4)))
    for f in range(2):
        for j in range(NR + 1):
            E.op("v_mov_b32 %s, 0" % vr(RAW[f] + 6 * j + 1))
    for ks in range(2):
        E.ops(mod2_rd(ks))


def mod2_rd(ks):
    a = M2A + 8 * (ks % 2)
    return ["ds_read_b128 %s, %s offset:%d" % (vr(a, 4), vr(vA0), 272 * ks),
            "ds_read_b128 %s, %s offset:%d" % (vr(a + 4, 4), vr(vA1), 272 * ks)]


def mod2_mfma(n):
    a, d, r = M2A + 8 * ((n >> 1) % 2), M2D[n % 3], raw_reg(n)
    return ["v_mfma_f32_16x16x32_bf16 %s, %s, %s, 0" % (vr(d, 4), vr(a, 4), vr(r - 2, 4)),
            "v_mfma_f32_16x16x32_bf16 %s, %s, %s, 0" % (vr(d + 4, 4), vr(a + 4, 4), vr(r + 2, 4))]


def mod2_after(base, n):
    o = []
    if n + 2 * NR < 64:
        o.append(raw_load(base, n + 2 * NR))
    if n & 1 and n // 2 + 2 < 32:
        o += [[t] for t in mod2_rd(n // 2 + 2)]
    return o


def load_x(E, base, first, last, nks_stride=None):
    out = []
    for n in range(first, last):
        ops = []
        if n % 4 == 0 or n == first:
            ops.append("s_add_u32 %s, %s, 0x%x" % (sr(s_x), sr(s_OW), base + 4096 * (n // 4)))
        ops.append("buffer_load_dwordx4 %s, %s, %s, %s offen offset:%d sc1" % (ar(4 * n, 4), vr(vL16), sr(sWS, 4), sr(s_x), 1024 * (n % 4)))
        out.append(ops)
    return out


def prologue(E):
    A = E.A
    A.raw(".globl %s" % L)
    A.raw(".p2align 8")
    A.raw(".type %s,@function" % L)
    A.label(L)
    if "t0" in DBG:
        A.op("s_memtime s[88:89]")
        A.op("s_memrealtime s[90:91]")
    A.op("s_cmp_ge_u32 s2, 256")
    A.op("s_cbranch_scc1 K_end")
    jitter(E, 7, True)
    jitter(E, 5)
    A.op("s_load_dwordx16 s[12:27], s[0:1], 32")
    A.op("s_load_dwordx4 s[4:7], s[0:1], 0")
    A.op("s_load_dwordx2 s[8:9], s[0:1], 16")
    if "stamp" in DBG:
        E.op("v_mov_b32 %s, 0" % vr(vST0))
        E.op("v_mov_b32 %s, 0" % vr(vST1))
    if "t0" in DBG:
        A.op("s_waitcnt lgkmcnt(0)")
        E.op("v_writelane_b32 %s, s88, 0" % vr(vST0))
        E.op("v_writelane_b32 %s, s90, 0" % vr(vST1))
        NSTAMP[0] = 1
        STAMP_NAMES.append("t0")
        stamp(E, "karg")
    E.op("v_lshrrev_b32 v2, 6, v0")
    E.op("v_and_b32 v1, 63, v0")
    E.op("v_readfirstlane_b32 %s, v2" % sr(s_w))
    mp = opt("MP", 1)
    E.op("s_and_b32 s3, s2, 7")
    E.op("s_lshr_b32 %s, s2, 3" % sr(s_t0))
    E.op("s_and_b32 %s, s3, %d" % (sr(s_c), (1 << mp) - 1))
    E.op("s_lshl_b32 %s, %s, %d" % (sr(s_c), sr(s_c), 4 - mp))
    E.op("s_and_b32 %s, %s, %d" % (sr(s_t1), sr(s_t0), (1 << (4 - mp)) - 1))
    E.op("s_add_u32 %s, %s, %s" % (sr(s_c), sr(s_c), sr(s_t1)))
    E.op("s_lshr_b32 %s, s3, %d" % (sr(s_rb), mp))
    E.op("s_lshl_b32 %s, %s, %d" % (sr(s_rb), sr(s_rb), 1 + mp))
    E.op("s_lshr_b32 %s, %s, %d" % (sr(s_t1), sr(s_t0), 4 - mp))
    E.op("s_add_u32 %s, %s, %s" % (sr(s_rb), sr(s_rb), sr(s_t1)))
    E.op("s_mov_b32 %s, 0x%x" % (sr(s_oob), OOB))
    E.op("v_lshlrev_b32 %s, 4, v1" % vr(vL16))
    E.op("v_mov_b32 %s, 1" % vr(vONE))
    E.op("s_lshl_b32 %s, %s, 13" % (sr(s_LW), sr(s_w)))
    E.op("s_mov_b32 %s, 1" % sr(s_one))
    t = T0
    E.op("v_mov_b32 %s, 0" % vr(t + 1))
    E.op("s_lshl_b32 %s, %s, 2" % (sr(s_t1), sr(s_rb)))
    E.op("s_add_u32 %s, %s, %s" % (sr(s_t1), sr(s_t1), sr(s_w)))
    E.op("s_lshl_b32 %s, %s, 16" % (sr(s_OW), sr(s_t1)))
    E.op("s_mul_i32 %s, %s, %d" % (sr(s_HW), sr(s_t1), 112 * 2048))
    E.op("s_lshl_b32 %s, s2, 2" % sr(s_i))
    E.op("s_add_u32 %s, %s, %s" % (sr(s_i), sr(s_i), sr(s_w)))
    E.op("v_lshlrev_b32 %s, 7, v1" % vr(t + 2))
    nsh = 4 - mp
    if opt("XHALF", 1):
        E.op("v_lshlrev_b32 %s, 8, v1" % vr(t + 5))
        E.op("s_lshr_b32 %s, %s, 3" % (sr(s_t0), sr(s_c)))
        E.op("s_lshl_b32 %s, %s, 7" % (sr(s_t0), sr(s_t0)))
        E.op("v_and_b32 %s, 0x1fff, %s" % (vr(t + 5), vr(t + 5)))
        E.op("v_add_u32 %s, %s, %s" % (vr(t + 5), sr(s_t0), vr(t + 5)))
    E.op("s_and_b32 %s, %s, %d" % (sr(s_t0), sr(s_c), (1 << nsh) - 1))
    E.op("s_lshl_b32 %s, %s, %d" % (sr(s_t0), sr(s_t0), 18 - nsh))
    E.op("s_lshl_b32 %s, %s, 18" % (sr(s_x), sr(s_rb)))
    E.op("s_add_u32 %s, %s, %s" % (sr(s_t0), sr(s_t0), sr(s_x)))
    E.op("s_add_u32 %s, %s, %s" % (sr(s_t2), sr(s_t0), sr(s_LW)))
    E.op("s_lshr_b32 %s, s2, 3" % sr(s_t0))
    E.op("s_lshl_b32 %s, %s, 2" % (sr(s_t0), sr(s_t0)))
    E.op("s_add_u32 %s, %s, %s" % (sr(s_t0), sr(s_t0), sr(s_w)))
    E.op("s_lshl_b32 %s, %s, 10" % (sr(s_t0), sr(s_t0)))
    E.op("v_lshl_add_u32 %s, v1, 4, %s" % (vr(t + 3), sr(s_t0)))
    E.op("v_min_u32 %s, K_last - K_pc, %s" % (vr(t + 3), vr(t + 3)))
    E.op("s_lshr_b32 %s, s2, 6" % sr(s_t0))
    E.op("s_lshl_b32 %s, %s, 9" % (sr(s_t0), sr(s_t0)))
    E.op("v_lshl_add_u32 %s, v1, 3, %s" % (vr(t + 4), sr(s_t0)))
    A.op("s_waitcnt lgkmcnt(0)")
    E.op("s_getpc_b64 s[0:1]")
    E.label("K_pc")
    srd(E, sWS, 26, WS_SIZE)
    srd(E, sX, 4, S * D * 2)
    stamp(E, "entry")
    E.op("s_cmp_lg_u32 %s, 1" % sr(s_i))
    E.op("s_cbranch_scc1 K_nz")
    if "late0" in DBG:
        for _ in range(4):
            A.op("s_sleep 100")
    E.op("s_movk_i32 %s, 8192" % sr(s_t0))
    A.op("buffer_store_dword %s, %s, %s, 0 offen sc1" % (vr(t + 1), vr(t + 2), sr(sWS, 4)))
    A.op("buffer_store_dword %s, %s, %s, %s offen sc1" % (vr(t + 1), vr(t + 2), sr(sWS, 4), sr(s_t0)))
    A.op("s_waitcnt vmcnt(0)")
    A.op("s_atomic_add %s, s[24:25], 0" % sr(s_one))
    E.label("K_nz")
    E.op("global_load_dwordx2 %s, %s, s[18:19]" % (vr(VC, 2), vr(t + 4)))
    E.op("global_load_dword %s, %s, s[0:1]" % (vr(vJUNK), vr(t + 3)))
    srd(E, sWM, 20, D * 6 * D * 2)
    with W0(E, "K_g1d"):
        g1_dma(E)
    if opt("XDELAY", 0):
        E.op("s_mov_b32 %s, %s" % (sr(s_xg), sr(s_t2)))
        setup_addrs(E)
        E.op("s_mov_b32 %s, %s" % (sr(s_t2), sr(s_xg)))
        E.op("v_lshlrev_b32 %s, 7, v1" % vr(t + 2))
    for q in range(max(1, 1 << (mp - 1)) if mp else 1):
        if q:
            E.op("s_add_u32 %s, %s, 32768" % (sr(s_t2), sr(s_t2)))
        E.op("buffer_load_dword %s, %s, %s, %s offen%s" % (vr(vJUNK), vr(t + (5 if opt("XHALF", 1) else 2)), sr(sX, 4), sr(s_t2), NT("X")))
    E.op("v_lshrrev_b32 %s, 3, v1" % vr(t))
    E.op("v_lshlrev_b32 %s, 11, %s" % (vr(t), vr(t)))
    E.op("v_add_u32 %s, %s, %s" % (vr(t), sr(s_x), vr(t)))
    E.op("v_and_b32 %s, 7, v1" % vr(t + 1))
    E.op("v_lshrrev_b32 %s, 4, v1" % vr(t + 2))
    E.op("v_xor_b32 %s, %s, %s" % (vr(t + 1), vr(t + 1), vr(t + 2)))
    E.op("v_lshl_add_u32 %s, %s, 4, %s" % (vr(VX), vr(t + 1), vr(t)))
    E.op("v_xor_b32 %s, 64, %s" % (vr(VX + 1), vr(VX)))
    E.op("v_add_u32 %s, %d, %s" % (vr(VX + 2), 2 * (8 * 2048 - 1024), vr(VX)))
    E.op("v_add_u32 %s, %d, %s" % (vr(VX + 3), 3 * (8 * 2048 - 1024), vr(VX + 1)))
    E.op("v_add_u32 %s, %d, %s" % (vr(VX + 1), 8 * 2048 - 1024, vr(VX + 1)))
    if not opt("XDELAY", 0):
        setup_addrs(E)


VX = AC[2]
VC = AC[0] + 4
G1R = AC[0] + 24


def code_touch(lab, n=1, off=0):
    out = []
    for i in range(n if "nocode" not in DBG else 0):
        out.append(["s_add_u32 s70, s0, %s - K_pc + %d" % (lab, 8192 * i + off),
                    "s_addc_u32 s71, s1, 0",
                    "global_load_dword %s, %s, s[70:71]" % (vr(vJUNK), vr(vCP))])
    return out


def touch(srd_, v, pitch, const):
    return ["s_mul_i32 %s, %s, %d" % (sr(s_pf), sr(s_i), pitch),
            "s_add_u32 %s, %s, 0x%x" % (sr(s_pf), sr(s_pf), const),
            "buffer_load_dword %s, %s, %s, %s offen%s" % (vr(vJUNK), vr(v), sr(srd_, 4), sr(s_pf), NT("W"))]


def h_lane_addr(E, dst):
    t = T0
    E.op("v_lshrrev_b32 %s, 2, v1" % vr(t))
    E.op("v_lshlrev_b32 %s, 6, %s" % (vr(t), vr(t)))
    E.op("v_bfe_u32 %s, v1, 1, 1" % vr(t + 1))
    E.op("v_bfe_u32 %s, v1, 4, 1" % vr(t + 2))
    E.op("v_lshl_or_b32 %s, %s, 1, %s" % (vr(t + 1), vr(t + 2), vr(t + 1)))
    E.op("v_lshl_add_u32 %s, %s, 4, %s" % (vr(t), vr(t + 1), vr(t)))
    E.op("v_and_b32 %s, 1, v1" % vr(t + 1))
    E.op("v_lshl_add_u32 %s, %s, 3, %s" % (vr(dst), vr(t + 1), vr(t)))
    E.op("v_xor_b32 %s, 32, %s" % (vr(dst + 1), vr(dst)))


def h_src_lane(E, dst, pitch, t=T0, s_t2=s_t2):
    E.op("v_lshrrev_b32 %s, 2, v1" % vr(t))
    E.op("s_movk_i32 %s, %d" % (sr(s_t2), pitch))
    E.op("v_mul_u32_u24 %s, %s, %s" % (vr(t), sr(s_t2), vr(t)))
    E.op("v_bfe_u32 %s, v1, 4, 1" % vr(t + 1))
    E.op("v_lshlrev_b32 %s, 1, %s" % (vr(t + 1), vr(t + 1)))
    E.op("v_and_b32 %s, 3, v1" % vr(t + 2))
    E.op("v_xor_b32 %s, %s, %s" % (vr(t + 1), vr(t + 1), vr(t + 2)))
    E.op("v_lshl_add_u32 %s, %s, 4, %s" % (vr(dst), vr(t + 1), vr(t)))


def x_dma(E, u, lds, glob, tag):
    E.op(lds)
    E.op(glob)
    for e in range(4):
        E.op("buffer_load_dwordx4 %s, %s, %s offen offset:%d lds" % (vr(VX + e), sr(sX, 4), sr(s_d), 1024 * e), tag=tag)


s_xl, s_xg = 20, 21


XS = 6


def x_own(E, u):
    x_dma(E, u, "s_add_u32 m0, %s, %d" % (sr(s_xl), 4096 * (u % XS)), "s_add_u32 %s, %s, %d" % (sr(s_d), sr(s_xg), 128 * u), "x%d" % u)


class W0:
    def __init__(self, E, lab):
        self.E, self.lab = E, lab

    def __enter__(self):
        E = self.E
        E.op("s_cmp_lg_u32 %s, 0" % sr(s_w))
        E.op("s_cbranch_scc1 %s" % self.lab)
        self.st = (list(E.vq), list(E.lq), E.sm, E.ret)

    def __exit__(self, *a):
        E = self.E
        E.wait(lg=0)
        E.label(self.lab)
        E.vq, E.lq, E.sm, E.ret = self.st
        E.A.op("s_nop 4")


def g1_dma(E):
    t = T0 + 5
    s_cg, s_k4 = s_P, s_cnt
    E.op("s_bfe_u32 %s, s2, 0x10003" % sr(s_t0))
    E.op("s_and_b32 %s, s2, 7" % sr(s_t1))
    E.op("s_lshl_b32 %s, %s, 1" % (sr(s_t1), sr(s_t1)))
    E.op("s_or_b32 %s, %s, %s" % (sr(s_t0), sr(s_t0), sr(s_t1)))
    E.op("s_and_b32 %s, s2, 0x30" % sr(s_t1))
    E.op("s_or_b32 %s, %s, %s" % (sr(s_cg), sr(s_t0), sr(s_t1)))
    E.op("s_lshr_b32 %s, s2, 6" % sr(s_k4))
    vg = AC[0]
    h_src_lane(E, vg, 12288, AC[0] + 8, s_t1)
    for i in range(1, 4):
        E.op("v_add_u32 %s, %d, %s" % (vr(vg + i), i * (16 * 12288 - 1024), vr(vg)))

    def g1_issue():
        E.op("s_mul_i32 %s, %s, %d" % (sr(s_t0), sr(s_k4), 256 * 12288))
        E.op("s_lshl_b32 %s, %s, 6" % (sr(s_t1), sr(s_cg)))
        E.op("s_add_u32 %s, %s, %s" % (sr(s_t0), sr(s_t0), sr(s_t1)))
        for q in range(16):
            if q % 4 == 0:
                E.op("s_mov_b32 m0, %d" % (XCH + 1024 * q))
                if q:
                    E.op("s_add_u32 %s, %s, %d" % (sr(s_t0), sr(s_t0), 64 * 12288))
            E.op("buffer_load_dwordx4 %s, %s, %s offen offset:%d%s lds" % (vr(vg + q % 4), sr(sWM, 4), sr(s_t0), 1024 * (q % 4), NT("G")), tag="g1")
        stamp(E, "g1 issued")
    g1_issue()


def g1_start(E):
    t = T0
    s_cg, s_k4 = s_P, s_cnt
    E.vq[2:2] = [(set(), "g1", 0)] * 16
    E.ops(blk_off(s_t0, s_c, 0))
    E.op("v_lshl_add_u32 %s, v1, 7, %s" % (vr(t + 3), sr(s_t0)))
    E.op("v_cmp_gt_u32 vcc, 8, v1")
    E.op("v_mov_b32 %s, %s" % (vr(t + 4), sr(s_oob)))
    E.op("v_cndmask_b32 %s, %s, %s, vcc" % (vr(t + 3), vr(t + 4), vr(t + 3)))
    E.op("s_and_b32 %s, s2, 127" % sr(s_t0))
    E.op("s_lshl_b32 %s, %s, 7" % (sr(s_t0), sr(s_t0)))
    E.op("s_add_u32 %s, %s, %d" % (sr(s_t0), sr(s_t0), WS_CNT + 128 * 128))
    E.op("v_writelane_b32 %s, %s, 8" % (vr(t + 3), sr(s_t0)))
    E.op("v_mov_b32 %s, 0" % vr(t + 4))
    E.op("v_mov_b32 %s, 0" % vr(t + 5))
    E.op("buffer_store_dwordx2 %s, %s, %s, 0 offen sc1" % (vr(t + 4, 2), vr(t + 3), sr(sWS, 4)))
    vc = VC
    c4, e4 = AC[0] + 8, AC[0] + 12
    E.op("v_lshlrev_b32 %s, 16, %s" % (vr(c4), vr(vc)))
    E.op("v_and_b32 %s, 0xffff0000, %s" % (vr(c4 + 1), vr(vc)))
    E.op("v_lshlrev_b32 %s, 16, %s" % (vr(c4 + 2), vr(vc + 1)))
    E.op("v_and_b32 %s, 0xffff0000, %s" % (vr(c4 + 3), vr(vc + 1)))
    for r in range(4):
        E.op("v_mul_f32 %s, 0xbfb8aa3b, %s" % (vr(e4 + r), vr(c4 + r)))
    for r in range(4):
        E.op("v_exp_f32 %s, %s" % (vr(e4 + r), vr(e4 + r)))
    for r in range(4):
        E.op("v_add_f32 %s, 1.0, %s" % (vr(e4 + r), vr(e4 + r)))
    for r in range(4):
        E.op("v_rcp_f32 %s, %s" % (vr(e4 + r), vr(e4 + r)))
    for r in range(4):
        E.op("v_mul_f32 %s, %s, %s" % (vr(c4 + r), vr(c4 + r), vr(e4 + r)))
    E.op("v_cvt_pk_bf16_f32 %s, %s, %s" % (vr(e4), vr(c4), vr(c4 + 1)))
    E.op("v_cvt_pk_bf16_f32 %s, %s, %s" % (vr(e4 + 1), vr(c4 + 2), vr(c4 + 3)))
    E.op("v_lshrrev_b32 %s, 3, v1" % vr(t))
    E.op("v_lshlrev_b32 %s, 6, %s" % (vr(t), vr(t)))
    E.op("v_and_b32 %s, 3, v1" % vr(t + 1))
    E.op("v_lshl_add_u32 %s, %s, 4, %s" % (vr(t), vr(t + 1), vr(t)))
    E.op("v_bfe_u32 %s, v1, 2, 1" % vr(t + 1))
    E.op("v_lshl_add_u32 %s, %s, 3, %s" % (vr(t), vr(t + 1), vr(t)))
    E.op("v_add_u32 %s, %d, %s" % (vr(t), CS, vr(t)))
    E.op("ds_write_b64 %s, %s" % (vr(t), vr(e4, 2)))
    cf = U
    E.op("v_and_b32 %s, 48, v1" % vr(t + 3))
    E.op("v_add_u32 %s, %d, %s" % (vr(t + 3), CS, vr(t + 3)))
    E.wait(lg=0)
    for ks in range(8):
        E.op("ds_read_b128 %s, %s offset:%d" % (vr(cf + 4 * ks, 4), vr(t + 3), 64 * ks))
    E.op("v_add_u32 %s, %d, %s" % (vr(G1R + 2), XCH, vr(aH[0][0])))
    E.op("v_add_u32 %s, %d, %s" % (vr(G1R + 3), XCH, vr(aH[0][1])))
    E.op("s_lshl_b32 %s, %s, 13" % (sr(s_t0), sr(s_k4)))
    E.op("s_lshl_b32 %s, %s, 7" % (sr(s_t1), sr(s_cg)))
    E.op("s_add_u32 %s, %s, %s" % (sr(s_t0), sr(s_t0), sr(s_t1)))
    E.op("s_add_u32 %s, %s, %d" % (sr(s_t0), sr(s_t0), WS_P1))
    E.op("v_and_b32 %s, 15, v1" % vr(t))
    E.op("v_and_b32 %s, 48, v1" % vr(t + 1))
    E.op("v_lshl_add_u32 %s, %s, 6, %s" % (vr(t + 1), vr(t), vr(t + 1)))
    E.op("v_add_u32 %s, %s, %s" % (vr(t + 1), sr(s_t0), vr(t + 1)))
    E.op("v_cmp_gt_u32 vcc, 2, %s" % vr(t))
    E.op("v_mov_b32 %s, %s" % (vr(t + 2), sr(s_oob)))
    E.op("v_cndmask_b32 %s, %s, %s, vcc" % (vr(G1R), vr(t + 2), vr(t + 1)))
    E.op("s_and_b32 %s, s2, 7" % sr(s_t0))
    E.op("s_lshl_b32 %s, %s, 11" % (sr(s_t0), sr(s_t0)))
    E.op("v_lshl_add_u32 %s, v1, 7, %s" % (vr(t + 1), sr(s_t0)))
    E.op("v_cmp_gt_u32 vcc, 16, v1")
    E.op("v_cndmask_b32 %s, %s, %s, vcc" % (vr(G1R + 1), vr(t + 2), vr(t + 1)))


def g1_compute(E):
    t = T0
    stamp(E, "g1 landed")
    wfr = WF
    d0 = AC[0] + 16
    cf = U
    E.op("v_and_b32 %s, 15, v1" % vr(t))
    E.op("v_cmp_eq_u32 vcc, 1, %s" % vr(t))
    for ks in range(8):
        for tp in range(2):
            for h in range(2):
                E.op("ds_read_b64_tr_b16 %s, %s offset:%d" % (vr(wfr + 8 * ks + 4 * tp + 2 * h, 2), vr(G1R + 2 + tp), 1024 * (2 * ks + h)))
    for ks in range(8):
        for tp in range(2):
            E.op("v_mfma_f32_16x16x32_bf16 %s, %s, %s, %s" % (vr(d0 + 4 * tp, 4), vr(wfr + 8 * ks + 4 * tp, 4), vr(cf + 4 * ks, 4),
                                                             "0" if ks == 0 else vr(d0 + 4 * tp, 4)))
    for r in range(4):
        E.op("v_cndmask_b32 %s, %s, %s, vcc" % (vr(d0 + r), vr(d0 + r), vr(d0 + 4 + r)))
    E.op("buffer_store_dwordx4 %s, %s, %s, 0 offen sc1" % (vr(d0, 4), vr(G1R), sr(sWS, 4)))
    E.A.op("s_load_dword %s, s[24:25], 0" % sr(s_P))


def dbg_check(E, lab):
    A = E.A
    t = T0
    E.op("s_mov_b32 %s, 0" % sr(s_cnt))
    E.label(lab + "chk")
    E.op("s_cmp_lg_u32 %s, 0" % sr(s_P))
    E.op("s_cbranch_scc1 %sok" % lab)
    E.op("v_mov_b32 %s, 0" % vr(t))
    E.op("s_sleep 4")
    A.op("global_load_dword %s, %s, s[24:25] sc1" % (vr(t + 1), vr(t)))
    E.op("s_add_u32 %s, %s, 1" % (sr(s_cnt), sr(s_cnt)))
    A.op("s_waitcnt vmcnt(0)")
    E.op("v_readfirstlane_b32 %s, %s" % (sr(s_P), vr(t + 1)))
    E.op("s_cmp_lt_u32 %s, 0x%x" % (sr(s_cnt), LIMIT))
    A.op("s_nop 3")
    E.op("s_cbranch_scc1 %schk" % lab)
    E.label(lab + "ok")


def g1_signal(E, younger):
    E.A.op("s_waitcnt vmcnt(%d) lgkmcnt(0)" % younger)
    dbg_check(E, "K_dbg")
    E.A.op(vsignal(G1R + 1))
    stamp(E, "h0 signalled")


def setup_addrs(E):
    t = T0
    srd(E, sQKV, 6, D * 3 * D * 2)
    srd(E, sWO, 8, D * D * 2)
    srd(E, sW1, 12, D * F * 2)
    srd(E, sW3, 14, D * F * 2)
    srd(E, sW2, 16, D * F * 2)
    srd(E, sOUT, 22, S * D * 2)
    E.op("s_cmp_ge_u32 %s, 2" % sr(s_w))
    E.op("s_cselect_b32 s%d, s14, s12" % sWH)
    E.op("s_cselect_b32 s%d, s15, s13" % (sWH + 1))
    E.op("s_mov_b32 s%d, 0x%x" % (sWH + 2, D * F * 2))
    E.op("s_mov_b32 s%d, 0x20000" % (sWH + 3))
    E.op("v_bfe_u32 %s, v1, 2, 3" % vr(t))
    E.op("v_and_b32 %s, 6, %s" % (vr(t + 1), vr(t)))
    E.op("v_bfe_u32 %s, v1, 1, 1" % vr(t + 2))
    E.op("v_xor_b32 %s, %s, %s" % (vr(t + 1), vr(t + 1), vr(t + 2)))
    E.op("v_lshlrev_b32 %s, 4, %s" % (vr(t + 1), vr(t + 1)))
    E.op("v_lshl_add_u32 %s, %s, 7, %s" % (vr(t + 1), vr(t), vr(t + 1)))
    E.op("v_and_b32 %s, 1, v1" % vr(t + 2))
    E.op("v_lshl_add_u32 %s, %s, 3, %s" % (vr(t + 1), vr(t + 2), vr(t + 1)))
    E.op("v_lshrrev_b32 %s, 5, v1" % vr(t + 2))
    E.op("v_lshl_add_u32 %s, %s, 13, %s" % (vr(aW[0][0]), vr(t + 2), vr(t + 1)))
    for q in range(1, 4):
        E.op("v_xor_b32 %s, %d, %s" % (vr(aW[0][q]), 32 * q, vr(aW[0][0])))
    for q in range(4):
        E.op("v_add_u32 %s, 0x10000, %s" % (vr(aW[1][q]), vr(aW[0][q])))
    h_lane_addr(E, aH[0][0])
    for q in range(2):
        E.op("v_add_u32 %s, 0x10000, %s" % (vr(aH[1][q]), vr(aH[0][q])))
    E.op("v_lshrrev_b32 %s, 3, v1" % vr(t))
    E.op("v_and_b32 %s, 6, %s" % (vr(t + 1), vr(t)))
    E.op("v_and_b32 %s, 7, v1" % vr(t + 2))
    E.op("v_xor_b32 %s, %s, %s" % (vr(t + 1), vr(t + 1), vr(t + 2)))
    E.op("v_lshlrev_b32 %s, 4, %s" % (vr(t + 1), vr(t + 1)))
    E.op("s_lshl_b32 %s, %s, 3" % (sr(s_t0), sr(s_w)))
    E.op("v_add_u32 %s, %s, %s" % (vr(t + 2), sr(s_t0), vr(t)))
    for vD, pitch in ((vD2, 2048), (vDm, 12288)):
        E.op("s_movk_i32 %s, %d" % (sr(s_t1), pitch))
        E.op("v_mad_u32_u24 %s, %s, %s, %s" % (vr(vD), vr(t + 2), sr(s_t1), vr(t + 1)))
        for i in range(1, 4):
            E.op("v_add_u32 %s, %d, %s" % (vr(vD + i), i * (32 * pitch - 1024), vr(vD)))
    E.op("s_and_b32 %s, %s, 1" % (sr(s_t0), sr(s_w)))
    E.op("s_lshl_b32 %s, %s, 4" % (sr(s_t0), sr(s_t0)))
    E.op("s_lshr_b32 %s, %s, 1" % (sr(s_t1), sr(s_w)))
    E.op("s_lshl_b32 %s, %s, 2" % (sr(s_t1), sr(s_t1)))
    E.op("s_add_u32 %s, %s, %s" % (sr(s_t1), sr(s_t0), sr(s_t1)))
    E.op("v_and_b32 %s, 4, %s" % (vr(t + 2), vr(t)))
    E.op("v_add3_u32 %s, %s, %s, %s" % (vr(t + 2), vr(t + 2), vr(t), sr(s_t1)))
    E.op("s_movk_i32 %s, 6144" % sr(s_t1))
    E.op("v_mad_u32_u24 %s, %s, %s, %s" % (vr(vDq), vr(t + 2), sr(s_t1), vr(t + 1)))
    for i in range(1, 4):
        E.op("v_add_u32 %s, %d, %s" % (vr(vDq + i), i * (32 * 6144 - 1024), vr(vDq)))
    E.op("s_lshl_b32 %s, %s, 7" % (sr(s_bq), sr(s_c)))
    E.op("s_and_b32 %s, %s, 3" % (sr(s_t0), sr(s_c)))
    E.op("s_lshl_b32 %s, %s, 2" % (sr(s_cw), sr(s_t0)))
    E.op("s_lshr_b32 %s, %s, 2" % (sr(s_t1), sr(s_c)))
    E.op("s_add_u32 %s, %s, %s" % (sr(s_cw), sr(s_cw), sr(s_t1)))
    E.op("s_lshl_b32 %s, %s, 7" % (sr(s_bo), sr(s_cw)))
    E.op("s_lshr_b32 %s, s2, 6" % sr(s_t0))
    E.op("s_mul_i32 %s, %s, %d" % (sr(s_bm), sr(s_t0), 256 * 12288))
    E.op("s_and_b32 %s, s2, 63" % sr(s_t0))
    E.op("s_lshl_b32 %s, %s, 7" % (sr(s_t0), sr(s_t0)))
    E.op("s_add_u32 %s, %s, %s" % (sr(s_bm), sr(s_bm), sr(s_t0)))
    E.op("s_add_u32 %s, %s, 4096" % (sr(s_bm), sr(s_bm)))
    for v in (G1R, G1R + 1):
        E.op("v_mov_b32 %s, %s" % (vr(v), sr(s_oob)))
    E.op("s_lshl_b32 %s, %s, 11" % (sr(s_t0), sr(s_w)))
    E.op("v_lshl_add_u32 %s, v1, 5, %s" % (vr(vCP), sr(s_t0)))
    E.op("v_cmp_gt_u32 vcc, 16, v1")
    E.op("v_mov_b32 %s, %s" % (vr(t + 1), sr(s_oob)))
    E.op("v_lshlrev_b32 %s, 7, v1" % vr(t))
    E.op("v_cndmask_b32 %s, %s, %s, vcc" % (vr(vPF), vr(t + 1), vr(t)))
    E.op("v_cmp_gt_u32 vcc, 8, v1")
    E.op("s_lshr_b32 %s, s2, 4" % sr(s_oH0))
    E.op("v_cndmask_b32 %s, %s, %s, vcc" % (vr(vTH), vr(t + 1), vr(t)))
    E.op("s_lshl_b32 %s, %s, 7" % (sr(s_oH0), sr(s_oH0)))
    E.ops(blk_off(s_oT, s_w, 5))
    E.op("s_lshr_b32 %s, s2, 3" % sr(s_t0))
    E.op("s_lshl_b32 %s, %s, 2" % (sr(s_t0), sr(s_t0)))
    E.op("s_add_u32 %s, %s, %s" % (sr(s_t0), sr(s_t0), sr(s_w)))
    E.op("s_mul_i32 %s, %s, %d" % (sr(s_t0), sr(s_t0), 8 * 6144))
    E.op("s_and_b32 %s, %s, 8" % (sr(s_t1), sr(s_c)))
    E.op("s_lshl_b32 %s, %s, 7" % (sr(s_t1), sr(s_t1)))
    E.op("s_add_u32 %s, %s, %s" % (sr(s_t0), sr(s_t0), sr(s_t1)))
    E.op("s_add_u32 %s, %s, 384" % (sr(s_t0), sr(s_t0)))
    E.op("v_and_b32 %s, 7, v1" % vr(t))
    E.op("v_mul_u32_u24 %s, 6144, %s" % (vr(t), vr(t)))
    E.op("v_add_u32 %s, %s, %s" % (vr(t), sr(s_t0), vr(t)))
    E.op("v_cndmask_b32 %s, %s, %s, vcc" % (vr(vA3), vr(t + 1), vr(t)))
    E.op("s_lshr_b32 %s, s2, 3" % sr(s_t0))
    E.op("s_lshl_b32 %s, %s, 15" % (sr(s_t0), sr(s_t0)))
    E.op("s_add_u32 %s, %s, %s" % (sr(s_t0), sr(s_t0), sr(s_LW)))
    E.op("v_lshl_add_u32 %s, v1, 10, %s" % (vr(t), sr(s_t0)))
    E.op("v_add_u32 %s, %s, %s" % (vr(vTF), vr(t), vr(vA3)))
    E.op("v_and_b32 %s, 31, v0" % vr(t))
    E.op("v_mul_u32_u24 %s, 272, %s" % (vr(t), vr(t)))
    E.op("v_add_u32 %s, %d, %s" % (vr(t), TD + 256, vr(t)))
    for i in range(4):
        E.op("v_mov_b32 %s, 0" % vr(t + 2 + i))
    E.op("ds_write_b128 %s, %s" % (vr(t), vr(t + 2, 4)))


def ff_addrs(E):
    t = T0
    E.op("v_lshrrev_b32 %s, 11, %s" % (vr(t), vr(vD2)))
    E.op("s_movk_i32 %s, %d" % (sr(s_t1), 7168 - 2048))
    E.op("v_mad_u32_u24 %s, %s, %s, %s" % (vr(vDf), vr(t), sr(s_t1), vr(vD2)))
    for i in range(1, 4):
        E.op("v_add_u32 %s, %d, %s" % (vr(vDf + i), i * (32 * 7168 - 1024), vr(vDf)))
    h_src_lane(E, vDh, 7168)
    E.op("s_and_b32 %s, %s, 1" % (sr(s_t0), sr(s_w)))
    E.op("s_mul_i32 %s, %s, %d" % (sr(s_t0), sr(s_t0), 16 * 7168))
    E.op("v_add_u32 %s, %s, %s" % (vr(vDh), sr(s_t0), vr(vDh)))
    for i in range(1, 4):
        E.op("v_add_u32 %s, %d, %s" % (vr(vDh + i), i * (32 * 7168 - 1024), vr(vDh)))


def x_stream(E, XRES, after, idle, late):
    t = T0
    G1E = 1
    E.op("s_mul_i32 %s, %s, %d" % (sr(s_xl), sr(s_w), 4096 * XS))
    E.op("s_lshl_b32 %s, %s, 16" % (sr(s_xg), sr(s_w)))
    if G1E:
        idle()
        mod_addrs(E)
    with W0(E, "K_g1a"):
        g1_start(E)
        if G1E:
            E.wait_tag("g1")
            g1_compute(E)
    for u in range(4):
        x_own(E, u)
    if G1E:
        with W0(E, "K_g1s"):
            g1_signal(E, 16)
    else:
        idle()
        mod_addrs(E)
    rx = AC[2] + 4
    E.op("v_and_b32 %s, 15, v1" % vr(t))
    E.op("v_lshrrev_b32 %s, 1, %s" % (vr(t + 1), vr(t)))
    E.op("v_lshrrev_b32 %s, 4, v1" % vr(t + 2))
    E.op("v_xor_b32 %s, %s, %s" % (vr(t + 3), vr(t + 1), vr(t + 2)))
    E.op("v_lshlrev_b32 %s, 4, %s" % (vr(t + 3), vr(t + 3)))
    E.op("v_lshl_add_u32 %s, %s, 7, %s" % (vr(t), vr(t), sr(s_xl)))
    E.op("v_add_u32 %s, %s, %s" % (vr(rx), vr(t), vr(t + 3)))
    E.op("v_xor_b32 %s, 64, %s" % (vr(rx + 1), vr(rx)))
    rr = AC[0]
    E.op("v_lshrrev_b32 %s, 5, v1" % vr(t + 3))
    E.op("v_xor_b32 %s, %s, %s" % (vr(t + 3), vr(t + 3), vr(t + 1)))
    E.op("v_lshl_add_u32 %s, %s, 4, %s" % (vr(t), vr(t + 3), vr(t)))
    E.op("v_and_b32 %s, 1, %s" % (vr(t + 2), vr(t + 2)))
    E.op("v_lshl_add_u32 %s, %s, 3, %s" % (vr(rr), vr(t + 2), vr(t)))
    for q in range(1, 4):
        E.op("v_xor_b32 %s, %d, %s" % (vr(rr + q), 32 * q, vr(rr)))
    ones = AC[2] + 8
    for i in range(4):
        E.op("v_mov_b32 %s, 0x3f803f80" % vr(ones + i))
    vsum = [AC[0] + 4, AC[0] + 8]
    vsq = [AC[0] + 12, AC[0] + 16]

    def stats(u):
        for kk in range(2):
            for f in range(2):
                x = XR(2 * u + kk, f)
                z = (u == 0 and kk == 0)
                E.op("v_mfma_f32_16x16x32_bf16 %s, %s, %s, %s" % (vr(vsum[f], 4), vr(ones, 4), x, "0" if z else vr(vsum[f], 4)))
                E.op("v_mfma_f32_16x16x32_bf16 %s, %s, %s, %s" % (vr(vsq[f], 4), x, x, "0" if z else vr(vsq[f], 4)))
    def reads(u):
        for kk in range(2):
            for f in range(2):
                E.op("ds_read_b128 %s, %s offset:%d" % (XR(2 * u + kk, f), vr(rx + kk), 4096 * (u % XS) + 2048 * f))
    LA = 4
    SIG = opt("SIGAT", 2)
    for u in range(17):
        if u < 16:
            E.wait_tag("x%d" % u)
        if u == 0:
            stamp(E, "x first")
            if not G1E:
                with W0(E, "K_g1c"):
                    g1_compute(E)
        if u == SIG and not G1E:
            with W0(E, "K_g1s"):
                g1_signal(E, 4 * SIG)
        if u < 16:
            reads(u)
        if u + LA < 16:
            x_own(E, u + LA)
        elif u + LA == 16:
            x_dma(E, 16, "s_add_u32 m0, %s, %d" % (sr(s_xl), 4096 * (16 % XS)), "s_add_u32 %s, %s, %s" % (sr(s_d), sr(s_xg), sr(s_bo)), "xr")
        if u == 16:
            E.wait_tag("xr")
            for f in range(2):
                for q in range(4):
                    E.op("ds_read_b64 %s, %s offset:%d" % (vr(XRES[f] + 2 * q, 2), vr(rr + q), 4096 * (16 % XS) + 2048 * f))
        if u:
            stats(u - 1)
        HP = opt("HP", 11)
        if u == 15:
            late()
        if u == HP - 4 and "norace" not in DBG:
            E.op("s_load_dword %s, s[24:25], 0" % sr(s_P))
        if u == HP:
            def pre():
                if "norace" not in DBG:
                    E.A.op("s_waitcnt lgkmcnt(0)")
                    dbg_check(E, "K_dbh")
            poll8_issue(E, 0, "h0", 3, pre)
        if u == HP + 1:
            poll8_check(E, 0, "h0", 3)
            stamp(E, "h0 seen")
            E.op("s_barrier")
            after()
    return vsum, vsq


class Rec:
    def __init__(self):
        self.l = []

    def op(self, t, tag=None):
        self.l.append(t)

    def ops(self, l):
        self.l += l


def singles(ops):
    return [X(t) for t in ops]


def finish(E):
    A = E.A
    E.label("K_fin")
    if "stamp" in DBG:
        E.force_wait(vm=True, lg=True)
        stamp(E, "end")
        E.op("s_lshl_b32 %s, s2, 2" % sr(s_t0))
        E.op("s_add_u32 %s, %s, %s" % (sr(s_t0), sr(s_t0), sr(s_w)))
        E.op("s_lshl_b32 %s, %s, 9" % (sr(s_t0), sr(s_t0)))
        E.op("s_add_u32 %s, %s, 0x%x" % (sr(s_t0), sr(s_t0), WS_STAMP))
        E.op("v_lshlrev_b32 v2, 2, v1")
        E.op("buffer_store_dword %s, v2, %s, %s offen" % (vr(vST0), sr(sWS, 4), sr(s_t0)))
        E.op("buffer_store_dword %s, v2, %s, %s offen offset:256" % (vr(vST1), sr(sWS, 4), sr(s_t0)))
    E.label("K_end")
    A.op("s_endpgm")
    A.hist = []
    for t in E.tail:
        if t.endswith(":"):
            A.label(t[:-1])
        else:
            A.op(t)
    A.label("K_last")
    A.raw(".fill 4096, 4, 0xbf800000")


def write(E, dst):
    ref = open(os.path.join(os.path.dirname(os.path.abspath(__file__)), "..", NAME + ".s.ref")).read()
    head = [l for l in ref.splitlines() if l.startswith(";") and "@launch" not in l]
    out = list(head)
    out.append("; @launch grid=(256,1,1) block=(256,1,1) lds=163840")
    if "stamp" in DBG:
        out.append("; stamps: " + "|".join(STAMP_NAMES))
    out.append('.amdgcn_target "amdgcn-amd-amdhsa--gfx950"')
    out.append(".text")
    out.append("\n".join(l.strip() for l in E.A.lines))
    out.append('.section .rodata,"a"')
    out.append(".p2align 6")
    out.append(".amdhsa_kernel %s" % L)
    out.append("  .amdhsa_next_free_vgpr 512")
    out.append("  .amdhsa_next_free_sgpr 102")
    out.append("  .amdhsa_accum_offset 256")
    out.append("  .amdhsa_group_segment_fixed_size 0")
    out.append("  .amdhsa_kernarg_size 96")
    out.append("  .amdhsa_user_sgpr_count 2")
    out.append("  .amdhsa_user_sgpr_kernarg_segment_ptr 1")
    out.append("  .amdhsa_system_sgpr_workgroup_id_x 1")
    out.append("  .amdhsa_float_denorm_mode_32 3")
    out.append(".end_amdhsa_kernel")
    txt = "\n".join(out) + "\n"
    open(dst, "w").write(txt)
    print("lines %d bytes %d nops %d" % (txt.count("\n"), len(txt), E.A.nops))


if __name__ == "__main__":
    import gen3_body
    gen3_body.main(sys.argv[1] if len(sys.argv) > 1 else os.path.join(os.path.dirname(os.path.abspath(__file__)), "..", NAME + ".s"))
```

```python
KERNELS = []
def vr(b, n=1):
    return "v%d" % b if n == 1 else "v[%d:%d]" % (b, b + n - 1)

def begin(A, L, nwg=256):
    A.raw(".globl %s" % L)
    A.raw(".p2align 8")
    A.raw(".type %s,@function" % L)
    A.label(L)
    A.hist = []
    A.op("s_cmp_ge_u32 s2, %d" % nwg)
    A.op("s_cbranch_scc1 %s_end" % L)

def finish(A, dst):
    out = []
    for (L, g, b, lds, nv, ns) in KERNELS:
        out.append("; @launch kernel=%s grid=(%d,1,1) block=(%d,1,1) lds=%d" % (L, g, b, lds))
    out.append('.amdgcn_target "amdgcn-amd-amdhsa--gfx950"')
    out.append(".text")
    out.append(A.text())
    out.append('.section .rodata,"a"')
    for (L, g, b, lds, nv, ns) in KERNELS:
        nv4 = (nv + 3) // 4 * 4
        out.append(".p2align 6")
        out.append(".amdhsa_kernel %s" % L)
        out.append("  .amdhsa_next_free_vgpr %d" % nv4)
        out.append("  .amdhsa_next_free_sgpr %d" % ns)
        out.append("  .amdhsa_accum_offset %d" % min(256, nv4))
        out.append("  .amdhsa_group_segment_fixed_size 0")
        out.append("  .amdhsa_kernarg_size 96")
        out.append("  .amdhsa_user_sgpr_count 2")
        out.append("  .amdhsa_user_sgpr_kernarg_segment_ptr 1")
        out.append("  .amdhsa_system_sgpr_workgroup_id_x 1")
        out.append("  .amdhsa_float_denorm_mode_32 3")
        out.append(".end_amdhsa_kernel")
    open(dst, "w").write("\n".join(out) + "\n")
    for k in KERNELS:
        print(k)
```

```python
import os, sys
sys.path.insert(0, os.path.join(os.path.dirname(os.path.abspath(__file__)), ".."))
from asmlib import Asm
import pw_gen_common as C
vr = C.vr

def kern(A, L, order, swap=False, accA=False, xV=False):
    C.begin(A, L)
    A.op("s_load_dwordx4 s[4:7], s[0:1], 0")
    A.op("v_lshrrev_b32 v2, 6, v0")
    A.op("v_and_b32 v1, 63, v0")
    A.op("v_readfirstlane_b32 s28, v2")
    A.op("s_waitcnt lgkmcnt(0)")
    A.op("s_mov_b32 s8, s4"); A.op("s_mov_b32 s9, s5"); A.op("s_mov_b32 s10, 0x800000"); A.op("s_mov_b32 s11, 0x20000")
    A.op("s_mov_b32 s12, s6"); A.op("s_mov_b32 s13, s7"); A.op("s_mov_b32 s14, 0x200000"); A.op("s_mov_b32 s15, 0x20000")
    A.op("v_lshlrev_b32 v3, 4, v0")
    A.op("s_lshl_b32 s3, s2, 14")
    A.op("v_add_u32 v3, s3, v3")
    for i in range(32):
        A.op("s_mov_b32 s16, %d" % ((i * 37 % 64) * 65536))
        A.op("buffer_load_dwordx4 %s, v3, s[8:11], s16 offen" % vr(64 + 4 * i, 4))
    X = (lambda ks, f: vr(192 + 8 * ks + 4 * f, 4)) if xV else (lambda ks, f: "a[%d:%d]" % (8 * ks + 4 * f, 8 * ks + 4 * f + 3))
    for i in range(16):
        A.op("s_mov_b32 s16, %d" % (((i + 40) * 37 % 64) * 65536))
        A.op("buffer_load_dwordx4 %s, v3, s[8:11], s16 offen" % X(i // 2, i % 2))
    acc = (lambda f, t: "a[%d:%d]" % (128 + 16 * f + 4 * t, 131 + 16 * f + 4 * t)) if accA else (lambda f, t: vr(16 + 16 * f + 4 * t, 4))
    A.op("v_mov_b32 v6, 0"); A.op("v_mov_b32 v7, 0")
    A.op("s_waitcnt vmcnt(0)")
    A.op("s_barrier")
    A.op("s_mov_b32 s20, 0")
    A.label(L + "_loop")
    A.op("s_memtime s[24:25]")
    A.op("s_memrealtime s[26:27]")
    for rep in range(2):
        seen = set()
        for (ks, t, f) in order:
            w, x = vr(64 + 16 * ks + 4 * t, 4), X(ks, f)
            a, b = (x, w) if swap else (w, x)
            c = acc(f, t) if (rep or (f, t) in seen) else "0"
            seen.add((f, t))
            A.raw("    v_mfma_f32_16x16x32_bf16 %s, %s, %s, %s" % (acc(f, t), a, b, c))
    A.op("s_waitcnt lgkmcnt(0)")
    A.op("v_cmp_eq_u32 vcc, s20, v1")
    A.op("v_mov_b32 v2, s24"); A.op("v_mov_b32 v3, s26")
    A.op("v_cndmask_b32 v6, v6, v2, vcc"); A.op("v_cndmask_b32 v7, v7, v3, vcc")
    A.op("s_add_u32 s20, s20, 1")
    A.op("s_cmp_lt_u32 s20, 40")
    A.op("s_cbranch_scc1 %s_loop" % L)
    A.op("s_nop 15")
    A.op("s_cmp_lg_u32 s28, 0")
    A.op("s_cbranch_scc1 %s_end" % L)
    A.op("s_lshl_b32 s3, s2, 9")
    A.op("v_lshl_add_u32 v3, v1, 3, s3")
    A.op("s_mov_b32 s16, %d" % (len(C.KERNELS) * 131072))
    A.op("buffer_store_dwordx2 v[6:7], v3, s[12:15], s16 offen")
    A.label(L + "_end")
    A.op("s_endpgm")
    C.KERNELS.append((L, 256, 256, 0, 512, 40))

cur = [(ks, t, f) for ks in range(8) for t in range(4) for f in range(2)]
fm = [(ks, t, f) for ks in range(8) for f in range(2) for t in range(4)]
snake = [(ks, t, f if t % 2 == 0 else 1 - f) for ks in range(8) for t in range(4) for f in range(2)]
d2 = [(ks, t, f) for t in range(4) for ks in range(8) for f in range(2)]
d1 = [(ks, t, f) for t in range(4) for f in range(2) for ks in range(8)]
d15 = [(ks, t, f if ks % 2 == 0 else 1 - f) for t in range(4) for ks in range(8) for f in range(2)]
def grp(n, boustro):
    o = []
    for t in range(4):
        flip = 0
        for g in range(0, 8, n):
            for j, f in enumerate((0, 1) if not (boustro and flip) else (1, 0)):
                ks = list(range(g, g + n))
                if boustro and j:
                    ks = ks[::-1]
                o += [(k, t, f) for k in ks]
            flip ^= 1
    return o
A = Asm()
kern(A, "cur_kernel", cur)
kern(A, "d15_kernel", d15)
kern(A, "g2_kernel", grp(2, False))
kern(A, "g2b_kernel", grp(2, True))
kern(A, "g4_kernel", grp(4, False))
kern(A, "g4b_kernel", grp(4, True))
kern(A, "d1_kernel", d1)
C.finish(A, sys.argv[1])
```
